```python
import torch

def _softmax(x, axis=-1):
    return torch.softmax(x, dim=axis)
def _gelu(x):
    return torch.nn.functional.gelu(x, approximate="tanh")
def _silu(x):
    return torch.nn.functional.silu(x)
def _sigmoid(x):
    return torch.sigmoid(x)
def _layernorm(x, axis=-1, eps=1e-5):
    m = x.mean(dim=axis, keepdim=True)
    v = x.var(dim=axis, keepdim=True, unbiased=False)
    return (x - m) / torch.sqrt(v + eps)
def _scatter_add(tgt, idx, src, axis=0):
    return tgt.clone().index_add_(axis, idx, src)
def _segment_sum(src, seg, n):
    out = torch.zeros((n,) + src.shape[1:], dtype=src.dtype)
    return out.index_add_(0, seg, src)
def _pad(x, pw):
    flat = tuple(v for pair in reversed(pw) for v in pair)
    return torch.nn.functional.pad(x, flat)

kernel_name = 'parallel_sum__gqa_block_cached__geglu_ffn__decode'

def setup_inputs():

    _w = (lambda a: (lambda t: t.to(torch.bfloat16) if t.is_floating_point() else t)(torch.as_tensor(a)))
    def _A_setup():
        B, Sq, D = 4, 1, 640
        Hq, Hkv, Sk, Dh = 32, 32, 4096, 128
        assert Hq % Hkv == 0, (Hq, Hkv)
        return {
            "x": _w((lambda *s: torch.randn(*s, dtype=torch.bfloat16) * 0.05)(B, Sq, D)),
            "k_cache": _w((lambda *s: torch.randn(*s, dtype=torch.bfloat16) * 3.2)(B, Hkv, Sk, Dh)),
            "v_cache": _w((lambda *s: torch.randn(*s, dtype=torch.bfloat16) * 1.6)(B, Hkv, Sk, Dh)),
            "wq": _w((lambda *s: torch.randn(*s, dtype=torch.bfloat16) * 3.2)(D, Hq * Dh) * (D ** -0.5)),
            "wo": _w((lambda *s: torch.randn(*s, dtype=torch.bfloat16) * 1.6)(Hq * Dh, D) * ((Hq * Dh) ** -0.5)),
        }
    _A_in = _A_setup()

    def _B_setup():
        B, S, D, F = 4, 1, 640, 1728
        return {
            "x": _w((lambda *s: torch.randn(*s, dtype=torch.bfloat16) * 0.05)(B, S, D)),
            "w_gate": _w((lambda *s: torch.randn(*s, dtype=torch.bfloat16) * 0.05)(D, F)),
            "w_up": _w((lambda *s: torch.randn(*s, dtype=torch.bfloat16) * 0.05)(D, F)),
            "w_down": _w((lambda *s: torch.randn(*s, dtype=torch.bfloat16) * 0.05)(F, D)),
        }
    _B_in = _B_setup()

    return {
        "A_x": _A_in["x"],
        "A_k_cache": _A_in["k_cache"],
        "A_v_cache": _A_in["v_cache"],
        "A_wq": _A_in["wq"],
        "A_wo": _A_in["wo"],
        "B_x": _B_in["x"],
        "B_w_gate": _B_in["w_gate"],
        "B_w_up": _B_in["w_up"],
        "B_w_down": _B_in["w_down"],
    }

def reference(A_x, A_k_cache, A_v_cache, A_wq, A_wo, B_x, B_w_gate, B_w_up, B_w_down):
    def _A_ref(x, k_cache, v_cache, wq, wo):
        B, Sq, D = x.shape
        Hq, Dh = 32, 128
        Hkv = k_cache.shape[1]
        rep = Hq // Hkv
        q = (lambda x, *d: x.permute(*d))((x @ wq).reshape(B, Sq, Hq, Dh), 0, 2, 1, 3)
        k = (lambda x, n, axis: torch.repeat_interleave(x, n, dim=axis))(k_cache, rep, axis=1)
        v = (lambda x, n, axis: torch.repeat_interleave(x, n, dim=axis))(v_cache, rep, axis=1)
        scores = torch.einsum("bhqd,bhkd->bhqk", q, k) * (Dh ** -0.5)
        p = _softmax(scores, axis=-1)
        o = torch.einsum("bhqk,bhkd->bhqd", p, v)
        return (lambda x, *d: x.permute(*d))(o, 0, 2, 1, 3).reshape(B, Sq, Hq * Dh) @ wo

    def _B_ref(x, w_gate, w_up, w_down):
        return (_gelu(x @ w_gate) * (x @ w_up)) @ w_down

    x = A_x
    xn = _layernorm(x, axis=-1)
    return x + _A_ref(xn, A_k_cache, A_v_cache, A_wq, A_wo) + _B_ref(xn, B_w_gate, B_w_up, B_w_down)
```

```python
import sys

NAME = "parallel_sum__gqa_block_cached__geglu_ffn__decode_kernel"

class Asm:
    def __init__(self):
        self.L = []
        self.fifo = 0
    def __call__(self, s):
        for line in s.split("\n"):
            t = line.strip()
            if not t: continue
            self.L.append(t if t.endswith(":") else "  " + t)
    def label(self, s): self.L.append(s + ":")
    def nop(self, n):
        while n > 0:
            k = min(n, 16)
            self.L.append(f"  s_nop {k-1}")
            n -= k
    def vm(self, s):
        self(s)
        self.fifo += 1
        return self.fifo - 1
    def wait_vm(self, idx, extra=""):
        n = min(self.fifo - 1 - idx, 63)
        self(f"s_waitcnt vmcnt({n}){extra}")
    def text(self): return "\n".join(self.L) + "\n"

def v(i, n=1): return f"v{i}" if n == 1 else f"v[{i}:{i+n-1}]"
def a(i, n=1): return f"a{i}" if n == 1 else f"a[{i}:{i+n-1}]"
def s(i, n=1): return f"s{i}" if n == 1 else f"s[{i}:{i+n-1}]"

Y_OFF   = 0
Y_SIZE  = 4*20*64*32*4
F_OFF   = Y_OFF + Y_SIZE
F_SIZE  = 4*2*4*1728*4
ST_OFF  = F_OFF + F_SIZE
ST_SIZE = 128*8*8
WS_SIZE = ST_OFF + ST_SIZE
DBG_OFF = 1 << 20
assert WS_SIZE <= 256*4096

L_XN = 0
L_QP = 10240
L_FP = 12288
L_OP = 20480
L_YP = 22528
LDS_SIZE = 43008

P_X, P_K, P_V, P_WQ, P_WO, P_BX, P_WG, P_WU, P_WD, P_OUT, P_DBG, P_WS = [4+2*i for i in range(12)]
R_K, R_V, R_CUR, R_WQ, R_WO, R_F1, R_WD, R_WS, R_X, R_OUT, R_DBG = [28+4*i for i in range(11)]
S_W, S_H, S_HALF, S_B, S_BH, S_SOFF, S_T0, S_T1, S_T2, S_T3 = range(72, 82)
S_RET = 82
S_M2 = 84
S_M1 = 86
S_FVAL = 88
S_SPIN = 90
S_ID = 91
S_WOOFF = 92
S_C1 = 93
S_C2 = 94
S_T4 = 95
S_EX = 96
NSGPR = 100

V_TID, V_LANE, V_C, V_SG, V_KOFF, V_WQOFF, V_WOOFF, V_F1OFF, V_FV, V_CX, V_FAC, V_MW, V_LW, V_POLL, V_PC0, V_PC1 = range(16)
V_T = 16
V_O = 80
V_A0 = 84
V_A1 = 88
V_ML = 92
V_M = 96
V_Q = 100
V_SC = 104
V_ACC = 112
V_BUF = 128
D = 32

A_W = 0
A_WD = 160
A_Y = 200
A_F = 220
A_Q = 236

SPIN_MAX = 100000
F32_INV640 = 0x3acccccd
F32_EPS = 0x3727c5ac
F32_SCALE = 0x3db504f3
F32_LOG2E = 0x3fb8aa3b

def allreduce(A, op, x, tmp):
    for r in (8, 4, 2, 1):
        A.nop(2)
        A(f"{op}_dpp {v(x)}, {v(x)}, {v(x)} row_ror:{r} row_mask:0xf bank_mask:0xf")
    A(f"v_mov_b32 {v(tmp)}, {v(x)}")
    A.nop(2)
    A(f"v_permlane16_swap_b32 {v(x)}, {v(tmp)}")
    A.nop(2)
    A(f"{op} {v(x)}, {v(x)}, {v(tmp)}")
    A(f"v_mov_b32 {v(tmp)}, {v(x)}")
    A.nop(2)
    A(f"v_permlane32_swap_b32 {v(x)}, {v(tmp)}")
    A.nop(2)
    A(f"{op} {v(x)}, {v(x)}, {v(tmp)}")

def rbf(A, x, tmp):
    A(f"v_cvt_pk_bf16_f32 {v(tmp)}, {v(x)}, {v(x)}")
    A(f"v_and_b32 {v(x)}, 0xffff0000, {v(tmp)}")

def gen(opts=None):
    o = dict(nt_kv=" nt", nt_w=" nt", dump=None)
    if opts: o.update(opts)
    NTK = o["nt_kv"]; NTW = o["nt_w"]
    A = Asm()
    T = V_T
    A.L.append(f"; @launch grid=(256,1,1) block=(256,1,1) lds={LDS_SIZE}")
    A.L.append('.amdgcn_target "amdgcn-amd-amdhsa--gfx950"')
    A.L.append(".text")
    A.L.append(f".globl {NAME}")
    A.L.append(".p2align 8")
    A.L.append(f".type {NAME},@function")
    A.label(NAME)
    A("s_cmp_ge_u32 s2, 256")
    A("s_cbranch_scc1 L_end")
    A("s_load_dwordx16 s[4:19], s[0:1], 0")
    A("s_load_dwordx8 s[20:27], s[0:1], 64")
    A(f"v_and_b32 {v(V_LANE)}, 63, v0")
    A(f"v_lshrrev_b32 {v(T)}, 6, v0")
    A(f"s_mov_b32 {s(S_ID)}, s2")
    A(f"v_readfirstlane_b32 {s(S_W)}, {v(T)}")
    A(f"s_and_b32 {s(S_H)}, s2, 31")
    A(f"s_bfe_u32 {s(S_HALF)}, s2, 0x10005")
    A(f"s_lshr_b32 {s(S_B)}, s2, 6")
    A(f"s_lshl_b32 {s(S_T0)}, {s(S_B)}, 5")
    A(f"s_add_u32 {s(S_BH)}, {s(S_T0)}, {s(S_H)}")
    A(f"v_and_b32 {v(V_C)}, 15, {v(V_LANE)}")
    A(f"v_lshrrev_b32 {v(V_SG)}, 4, {v(V_LANE)}")
    A(f"v_lshlrev_b32 {v(T+1)}, 4, {v(V_LANE)}")
    A(f"v_lshlrev_b32 {v(T+2)}, 4, {v(V_C)}")
    A(f"s_lshl_b32 {s(S_T0)}, {s(S_BH)}, 20")
    A(f"s_lshl_b32 {s(S_T1)}, {s(S_HALF)}, 19")
    A(f"s_add_u32 {s(S_T0)}, {s(S_T0)}, {s(S_T1)}")
    A(f"s_lshl_b32 {s(S_T1)}, {s(S_W)}, 10")
    A(f"v_add_u32 {v(V_KOFF)}, {s(S_T1)}, {v(T+1)}")
    A(f"v_lshl_add_u32 {v(V_WQOFF)}, {v(V_SG)}, 13, {v(T+2)}")
    A(f"v_mul_u32_u24 {v(V_WOOFF)}, 1280, {v(V_SG)}")
    A(f"v_add_u32 {v(V_WOOFF)}, {v(V_WOOFF)}, {v(T+2)}")
    A(f"v_lshlrev_b32 {v(T+3)}, 4, v0")
    A(f"v_lshlrev_b32 {v(T+8)}, 2, {v(V_LANE)}")
    for i in range(4): A(f"v_mov_b32 {v(T+4+i)}, -1")
    A("s_waitcnt lgkmcnt(0)")
    def srd(r, p, size, add=None):
        if add is None:
            A(f"s_mov_b32 {s(r)}, {s(p)}")
            A(f"s_mov_b32 {s(r+1)}, {s(p+1)}")
        else:
            A(f"s_add_u32 {s(r)}, {s(p)}, {s(add)}")
            A(f"s_addc_u32 {s(r+1)}, {s(p+1)}, 0")
        A(f"s_mov_b32 {s(r+2)}, {size}")
        A(f"s_mov_b32 {s(r+3)}, 0x20000")
    srd(R_X, P_X, 5120)
    srd(R_WS, P_WS, WS_SIZE)
    srd(R_WQ, P_WQ, 640*8192)
    A(f"s_lshl_b32 {s(S_T1)}, s2, 12")
    A.vm(f"buffer_store_dwordx4 {v(T+4,4)}, {v(T+3)}, {s(R_WS,4)}, {s(S_T1)} offen sc0 sc1")
    VX = T + 10
    A(f"s_mul_i32 {s(S_T1)}, {s(S_W)}, 1280")
    xl = []
    for k in range(5):
        xl.append(A.vm(f"buffer_load_dword {v(VX+k)}, {v(T+8)}, {s(R_X,4)}, {s(S_T1)} offen offset:{256*k}"))
    A(f"s_mul_i32 {s(S_T2)}, {s(S_W)}, {40*32768}")
    A(f"s_lshl_b32 {s(S_T3)}, {s(S_H)}, 8")
    A(f"s_add_u32 {s(S_T2)}, {s(S_T2)}, {s(S_T3)}")
    wq_idx = []
    def wq_load():
        t = len(wq_idx)
        wq_idx.append(A.vm(f"buffer_load_dwordx4 {a(A_W+4*t,4)}, {v(V_WQOFF)}, {s(R_WQ,4)}, {s(S_T2)} offen{NTW}"))
        A(f"s_add_u32 {s(S_T2)}, {s(S_T2)}, 32768")
    for t in range(10): wq_load()
    srd(R_K, P_K, 1 << 19, add=S_T0)
    srd(R_V, P_V, 1 << 19, add=S_T0)
    srd(R_WO, P_WO, 4096*1280)
    srd(R_WD, P_WD, 1728*1280)
    srd(R_OUT, P_OUT, 5120)
    srd(R_DBG, P_DBG, 256)
    for i in range(4): A(f"s_mov_b32 {s(R_CUR+i)}, {s(R_K+i)}")
    A(f"s_bitcmp1_b32 {s(S_ID)}, 2")
    A(f"s_cselect_b32 {s(R_F1)}, {s(P_WU)}, {s(P_WG)}")
    A(f"s_cselect_b32 {s(R_F1+1)}, {s(P_WU+1)}, {s(P_WG+1)}")
    A(f"s_cmp_lt_u32 {s(S_ID)}, 216")
    A(f"s_cselect_b32 {s(R_F1+2)}, {640*3456}, 0")
    A(f"s_mov_b32 {s(R_F1+3)}, 0x20000")
    t0, t1, t2 = T+16, T+17, T+18
    A(f"v_and_b32 {v(t0)}, 1, {v(V_LANE)}")
    A(f"v_cmp_eq_u32 vcc, 1, {v(t0)}")
    A(f"v_mov_b32 {v(t1)}, 0xffff")
    A(f"v_mov_b32 {v(t2)}, 0xffff0000")
    A(f"v_cndmask_b32 {v(t1)}, {v(t1)}, {v(t2)}, vcc")
    A(f"v_bfe_u32 {v(t0)}, {v(V_LANE)}, 1, 2")
    for t in range(4):
        A(f"v_cmp_eq_u32 vcc, {t}, {v(t0)}")
        A.nop(2)
        A(f"v_cndmask_b32 {v(V_M+t)}, 0, {v(t1)}, vcc")
    A(f"v_cmp_gt_u32 vcc, 8, {v(V_C)}")
    A.nop(2)
    for t in range(4):
        A(f"v_cndmask_b32 {v(V_ML+t)}, 0, {v(V_M+t)}, vcc")
    A(f"s_mov_b32 {s(S_M2)}, 0xcccccccc\ns_mov_b32 {s(S_M2+1)}, 0xcccccccc")
    A(f"s_mov_b32 {s(S_M1)}, 0xaaaaaaaa\ns_mov_b32 {s(S_M1+1)}, 0xaaaaaaaa")
    A(f"s_mov_b32 {s(S_FVAL)}, 0x00ff00ff\ns_mov_b32 {s(S_FVAL+1)}, 0xff00ff00")
    A(f"v_bfe_u32 {v(t0)}, {v(V_LANE)}, 3, 1")
    A(f"v_lshl_add_u32 {v(t0)}, {v(V_SG)}, 1, {v(t0)}")
    A(f"v_mul_u32_u24 {v(V_F1OFF)}, 3456, {v(t0)}")
    A(f"v_and_b32 {v(t1)}, 7, {v(V_LANE)}")
    A(f"v_lshl_add_u32 {v(V_F1OFF)}, {v(t1)}, 4, {v(V_F1OFF)}")
    A.wait_vm(xl[-1])
    F = T + 20
    DV = T + 32
    SUM, TMP, MEAN, MB, RS, SD, XA = T+44, T+45, T+46, T+47, T+48, T+49, T+50
    for k in range(5):
        A(f"v_lshlrev_b32 {v(F+2*k)}, 16, {v(VX+k)}")
        A(f"v_and_b32 {v(F+2*k+1)}, 0xffff0000, {v(VX+k)}")
    A(f"v_add_f32 {v(SUM)}, {v(F)}, {v(F+1)}")
    for k in range(2, 10): A(f"v_add_f32 {v(SUM)}, {v(SUM)}, {v(F+k)}")
    for _ in range(4): wq_load()
    allreduce(A, "v_add_f32", SUM, TMP)
    A(f"v_mul_f32 {v(MEAN)}, {F32_INV640:#x}, {v(SUM)}")
    for k in range(10): A(f"v_sub_f32 {v(DV+k)}, {v(F+k)}, {v(MEAN)}")
    A(f"v_mul_f32 {v(SUM)}, {v(DV)}, {v(DV)}")
    for k in range(1, 10): A(f"v_fmac_f32 {v(SUM)}, {v(DV+k)}, {v(DV+k)}")
    for _ in range(4): wq_load()
    allreduce(A, "v_add_f32", SUM, TMP)
    A(f"v_mul_f32 {v(SUM)}, {F32_INV640:#x}, {v(SUM)}")
    rbf(A, SUM, TMP)
    A(f"v_add_f32 {v(SUM)}, {F32_EPS:#x}, {v(SUM)}")
    rbf(A, SUM, TMP)
    A(f"v_sqrt_f32 {v(SD)}, {v(SUM)}")
    A.nop(1)
    A(f"v_rcp_f32 {v(RS)}, {v(SD)}")
    A(f"v_fma_f32 {v(TMP)}, -{v(SD)}, {v(SD)}, {v(SUM)}")
    A(f"v_mul_f32 {v(RS)}, 0.5, {v(RS)}")
    A(f"v_fmac_f32 {v(SD)}, {v(TMP)}, {v(RS)}")
    rbf(A, SD, TMP)
    A(f"v_rcp_f32 {v(RS)}, {v(SD)}")
    A(f"v_mov_b32 {v(MB)}, {v(MEAN)}")
    rbf(A, MB, TMP)
    for _ in range(4): wq_load()
    A(f"v_and_b32 {v(XA)}, 1, {v(V_LANE)}")
    A(f"v_mul_u32_u24 {v(XA)}, 320, {v(XA)}")
    A(f"v_lshrrev_b32 {v(TMP)}, 1, {v(V_LANE)}")
    A(f"v_add_lshl_u32 {v(XA)}, {v(XA)}, {v(TMP)}, 2")
    A(f"s_mul_i32 {s(S_T1)}, {s(S_W)}, 2560")
    A(f"v_add_u32 {v(XA)}, {s(S_T1)}, {v(XA)}")
    for k in range(5):
        d0, d1, pk, q0, q1, e0 = DV+0, DV+1, DV+2, DV+3+2*(k&1), DV+4+2*(k&1), DV+8
        A(f"v_sub_f32 {v(d0)}, {v(F+2*k)}, {v(MB)}")
        A(f"v_sub_f32 {v(d1)}, {v(F+2*k+1)}, {v(MB)}")
        A(f"v_cvt_pk_bf16_f32 {v(pk)}, {v(d0)}, {v(d1)}")
        A(f"v_lshlrev_b32 {v(d0)}, 16, {v(pk)}")
        A(f"v_and_b32 {v(d1)}, 0xffff0000, {v(pk)}")
        for (d, q) in ((d0, q0), (d1, q1)):
            A(f"v_mul_f32 {v(q)}, {v(d)}, {v(RS)}")
            A(f"v_fma_f32 {v(e0)}, -{v(q)}, {v(SD)}, {v(d)}")
            A(f"v_fmac_f32 {v(q)}, {v(e0)}, {v(RS)}")
            A(f"v_cvt_pk_bf16_f32 {v(q)}, {v(q)}, {v(q)}")
        A(f"ds_write_b32 {v(XA)}, {v(q0)} offset:{L_XN + 128*k}")
        A(f"ds_write_b32 {v(XA)}, {v(q1)} offset:{L_XN + 128*k + 640}")
        if k < 4:
            wq_load(); wq_load()
    A("s_waitcnt lgkmcnt(0)")
    A("s_barrier")
    A(f"s_cmp_eq_u32 {s(S_W)}, 0")
    A("s_cbranch_scc0 L_nosig")
    A(f"s_and_b32 {s(S_T1)}, {s(S_ID)}, 3")
    A(f"s_lshl_b32 {s(S_T1)}, {s(S_T1)}, 6")
    A(f"v_mov_b32 {v(DV)}, 0\nv_mov_b32 {v(DV+1)}, 1")
    A("s_mov_b64 exec, 1")
    A(f"buffer_atomic_add {v(DV+1)}, {v(DV)}, {s(R_DBG,4)}, {s(S_T1)} offen sc1")
    A("s_mov_b64 exec, -1")
    A.label("L_nosig")
    while len(wq_idx) < 40: wq_load()
    A(f"s_and_b32 {s(S_T1)}, {s(S_ID)}, 3")
    A(f"s_mul_i32 {s(S_T1)}, {s(S_T1)}, 160")
    A(f"s_mul_i32 {s(S_T3)}, {s(S_W)}, 40")
    A(f"s_add_u32 {s(S_C1)}, {s(S_T1)}, {s(S_T3)}")
    A(f"s_mul_i32 {s(S_T1)}, {s(S_C1)}, 3456")
    A(f"s_lshr_b32 {s(S_C2)}, {s(S_ID)}, 3")
    A(f"s_lshl_b32 {s(S_T3)}, {s(S_C2)}, 7")
    A(f"s_add_u32 {s(S_T1)}, {s(S_T1)}, {s(S_T3)}")
    f1_idx = []
    for tau in range(5):
        f1_idx.append(A.vm(f"buffer_load_dwordx4 {a(A_WD+4*tau,4)}, {v(V_F1OFF)}, {s(R_F1,4)}, {s(S_T1)} offen{NTW}"))
        A(f"s_add_u32 {s(S_T1)}, {s(S_T1)}, {8*3456}")
    A(f"s_mov_b32 {s(S_SOFF)}, 0")
    k_idx = []
    def k_load():
        i = len(k_idx)
        k_idx.append(A.vm(f"buffer_load_dwordx4 {v(V_BUF+4*i,4)}, {v(V_KOFF)}, {s(R_CUR,4)}, {s(S_SOFF)} offen{NTK}"))
        A(f"s_add_u32 {s(S_SOFF)}, {s(S_SOFF)}, 4096")
    XR = T + 60
    XV = T
    A(f"v_mul_u32_u24 {v(XR)}, 640, {v(V_SG)}")
    A(f"s_mul_i32 {s(S_T1)}, {s(S_B)}, 2560")
    A(f"s_mul_i32 {s(S_T3)}, {s(S_W)}, 160")
    A(f"s_add_u32 {s(S_T1)}, {s(S_T1)}, {s(S_T3)}")
    A(f"v_add_u32 {v(XR)}, {s(S_T1)}, {v(XR)}")
    for j in range(10):
        A(f"ds_read_b128 {v(XV+4*j,4)}, {v(XR)} offset:{L_XN + 16*j}")
    for _ in range(4): k_load()
    A("s_waitcnt lgkmcnt(0)")
    def mkA(dst, src, masks=V_M):
        for k in range(4): A(f"v_and_b32 {v(dst+k)}, {v(src)}, {v(masks+k)}")
    mkA(V_A0, XV)
    for t in range(40):
        cur, nxt = (V_A0, V_A1) if t % 2 == 0 else (V_A1, V_A0)
        if t + 1 < 40: mkA(nxt, XV + t + 1)
        else: A.nop(2)
        if t % 4 == 0: A.wait_vm(wq_idx[min(t+3, 39)])
        c = "0" if t == 0 else a(A_Q, 4)
        A(f"v_mfma_f32_16x16x32_bf16 {a(A_Q,4)}, {v(cur,4)}, {a(A_W+4*t,4)}, {c}")
        if t % 4 == 3 and len(k_idx) < 14: k_load()
    FR = T + 61
    A(f"v_bfe_u32 {v(T+62)}, {v(V_LANE)}, 3, 1")
    A(f"v_lshl_add_u32 {v(T+62)}, {v(V_SG)}, 1, {v(T+62)}")
    A(f"v_and_b32 {v(T+62)}, 3, {v(T+62)}")
    A(f"v_mul_u32_u24 {v(FR)}, 160, {v(T+62)}")
    A(f"v_lshrrev_b32 {v(T+62)}, 1, {v(V_SG)}")
    A(f"v_add_u32 {v(FR)}, {v(FR)}, {v(T+62)}")
    A(f"s_lshr_b32 {s(S_T1)}, {s(S_C1)}, 2")
    A(f"v_add_lshl_u32 {v(FR)}, {v(FR)}, {s(S_T1)}, 2")
    FX = T
    for tau in range(5):
        for b in range(4):
            A(f"ds_read_b32 {v(FX+4*tau+b)}, {v(FR)} offset:{L_XN + b*2560 + tau*8}")
    QA = T + 63
    A(f"v_and_b32 {v(QA)}, 1, {v(V_SG)}")
    A(f"v_lshlrev_b32 {v(QA)}, 2, {v(QA)}")
    A(f"v_lshl_add_u32 {v(QA)}, {v(V_C)}, 3, {v(QA)}")
    A(f"s_lshl_b32 {s(S_T1)}, {s(S_W)}, 7")
    A(f"v_add_lshl_u32 {v(QA)}, {v(QA)}, {s(S_T1)}, 2")
    A.nop(4)
    A(f"ds_write_b128 {v(QA)}, {a(A_Q,4)} offset:{L_QP}")
    A.wait_vm(f1_idx[-1], " lgkmcnt(0)")
    seq = [(tau, b) for tau in range(5) for b in range(4)]
    mkA(V_A0, FX)
    for n, (tau, b) in enumerate(seq):
        cur, nxt = (V_A0, V_A1) if n % 2 == 0 else (V_A1, V_A0)
        if n + 1 < len(seq): mkA(nxt, FX + n + 1)
        else: A.nop(2)
        c = "0" if tau == 0 else a(A_F+4*b, 4)
        A(f"v_mfma_f32_16x16x32_bf16 {a(A_F+4*b,4)}, {v(cur,4)}, {a(A_WD+4*tau,4)}, {c}")
    FA = T + 62
    A(f"v_bfe_u32 {v(FA)}, {v(V_LANE)}, 3, 1")
    A(f"v_lshlrev_b32 {v(FA)}, 6, {v(FA)}")
    A(f"v_and_b32 {v(T+61)}, 7, {v(V_LANE)}")
    A(f"v_lshl_add_u32 {v(FA)}, {v(T+61)}, 3, {v(FA)}")
    A(f"v_and_b32 {v(T+61)}, 1, {v(V_SG)}")
    A(f"v_lshl_add_u32 {v(FA)}, {v(T+61)}, 2, {v(FA)}")
    A(f"s_lshl_b32 {s(S_T1)}, {s(S_W)}, 9")
    A(f"v_add_lshl_u32 {v(FA)}, {v(FA)}, {s(S_T1)}, 2")
    A.nop(4)
    A(f"s_mov_b64 exec, {s(S_FVAL,2)}")
    for b in range(4):
        A(f"ds_write_b128 {v(FA)}, {a(A_F+4*b,4)} offset:{L_FP + b*512}")
    A("s_mov_b64 exec, -1")
    while len(k_idx) < 16: k_load()
    A("s_waitcnt lgkmcnt(0)")
    A("s_barrier")
    QR = T + 60
    A(f"v_lshlrev_b32 {v(QR)}, 5, {v(V_C)}")
    for w in range(4):
        A(f"ds_read_b128 {v(T+8*w,4)}, {v(QR)} offset:{L_QP + w*512}")
        A(f"ds_read_b128 {v(T+8*w+4,4)}, {v(QR)} offset:{L_QP + w*512 + 16}")
    FRD = T + 61
    A(f"v_lshlrev_b32 {v(FRD)}, 2, {v(V_LANE)}")
    A(f"s_lshl_b32 {s(S_T1)}, {s(S_W)}, 9")
    A(f"v_add_u32 {v(FRD)}, {s(S_T1)}, {v(FRD)}")
    for w in range(4):
        for rp in range(2):
            A(f"ds_read_b32 {v(T+32+2*w+rp)}, {v(FRD)} offset:{L_FP + w*2048 + rp*256}")
    for _ in range(4): k_load()
    A("s_waitcnt lgkmcnt(0)")
    for e in range(8):
        A(f"v_add_f32 {v(T+e)}, {v(T+e)}, {v(T+8+e)}")
        A(f"v_add_f32 {v(T+16+e)}, {v(T+16+e)}, {v(T+24+e)}")
    for e in range(8): A(f"v_add_f32 {v(T+e)}, {v(T+e)}, {v(T+16+e)}")
    for k in range(4): A(f"v_cvt_pk_bf16_f32 {v(V_Q+k)}, {v(T+2*k)}, {v(T+2*k+1)}")
    A(f"v_add_f32 {v(V_FV)}, {v(T+32)}, {v(T+33)}")
    for k in range(2, 8): A(f"v_add_f32 {v(V_FV)}, {v(V_FV)}, {v(T+32+k)}")
    def poll_cleared():
        A(f"v_and_b32 {v(T+40)}, 3, {v(V_LANE)}")
        A(f"v_lshlrev_b32 {v(T+40)}, 6, {v(T+40)}")
        A.vm(f"buffer_load_dword {v(V_POLL)}, {v(T+40)}, {s(R_DBG,4)}, 0 offen sc1")
    poll_cleared()
    while len(k_idx) < 32: k_load()
    if o["dump"] == "q":
        dump(A, [V_Q, V_Q+1, V_Q+2, V_Q+3, V_FV]);
    def wo_loads(tau0):
        for tau in (tau0, tau0+1):
            for u in range(5):
                A.vm(f"buffer_load_dwordx4 {a(A_W+4*(tau*5+u),4)}, {v(V_WOOFF)}, {s(R_WO,4)}, {s(S_WOOFF)} offen offset:{256*u}{NTW}")
            A(f"s_add_u32 {s(S_WOOFF)}, {s(S_WOOFF)}, {4*1280}")
    A(f"s_lshl_b32 {s(S_T1)}, {s(S_H)}, 7")
    A(f"s_lshl_b32 {s(S_T3)}, {s(S_W)}, 5")
    A(f"s_add_u32 {s(S_T1)}, {s(S_T1)}, {s(S_T3)}")
    A(f"s_mul_i32 {s(S_WOOFF)}, {s(S_T1)}, 1280")
    def call(lbl):
        A(f"s_call_b64 {s(S_RET,2)}, {lbl}")
    def savesc(k):
        A(f"v_mov_b32 {v(V_SC+2*k)}, {v(V_PC0)}\nv_mov_b32 {v(V_SC+2*k+1)}, {v(V_PC1)}")
    spin_id = [0]
    def spin_check(check, reload_):
        i = spin_id[0]; spin_id[0] += 1
        A(f"s_mov_b32 {s(S_SPIN)}, 0")
        A.label(f"L_sp{i}")
        check()
        A(f"s_cbranch_vccz L_spd{i}")
        A(f"s_add_u32 {s(S_SPIN)}, {s(S_SPIN)}, 1")
        A(f"s_cmp_ge_u32 {s(S_SPIN)}, {SPIN_MAX}")
        A(f"s_cbranch_scc1 L_spd{i}")
        A("s_sleep 2")
        f = A.fifo
        reload_()
        A.fifo = f
        A("s_waitcnt vmcnt(0)")
        A(f"s_branch L_sp{i}")
        A.label(f"L_spd{i}")
    call("L_kbody"); savesc(0)
    def chk_cleared():
        A(f"v_cmp_ne_u32 vcc, 64, {v(V_POLL)}")
        A.nop(5)
    spin_check(chk_cleared, poll_cleared)
    A(f"s_cmp_lt_u32 {s(S_ID)}, 216")
    A("s_cbranch_scc0 L_nofpub")
    A(f"s_and_b32 {s(S_T1)}, {s(S_ID)}, 3")
    A(f"s_lshl_b32 {s(S_T1)}, {s(S_T1)}, 1")
    A(f"s_bfe_u32 {s(S_T3)}, {s(S_ID)}, 0x10002")
    A(f"s_add_u32 {s(S_T1)}, {s(S_T1)}, {s(S_T3)}")
    A(f"s_mul_i32 {s(S_T1)}, {s(S_T1)}, 27648")
    A(f"s_mul_i32 {s(S_T3)}, {s(S_W)}, 6912")
    A(f"s_add_u32 {s(S_T1)}, {s(S_T1)}, {s(S_T3)}")
    A(f"s_lshl_b32 {s(S_T3)}, {s(S_C2)}, 8")
    A(f"s_add_u32 {s(S_T1)}, {s(S_T1)}, {s(S_T3)}")
    A(f"s_add_u32 {s(S_T1)}, {s(S_T1)}, {F_OFF}")
    A(f"v_lshlrev_b32 {v(T)}, 2, {v(V_LANE)}")
    A(f"buffer_store_dword {v(V_FV)}, {v(T)}, {s(R_WS,4)}, {s(S_T1)} offen sc0 sc1")
    A.label("L_nofpub")
    wo_loads(0)
    call("L_kbody"); savesc(1); wo_loads(2)
    call("L_kbody"); savesc(2); wo_loads(4)
    for i in range(4): A(f"s_mov_b32 {s(R_CUR+i)}, {s(R_V+i)}")
    A(f"s_mov_b32 {s(S_SOFF)}, 0")
    call("L_kbody"); savesc(3); wo_loads(6)
    if o["dump"] == "sraw": dump(A, [V_SC+i for i in range(8)])
    for k in range(4):
        x0, x1 = V_SC+2*k, V_SC+2*k+1
        A(f"v_cvt_pk_bf16_f32 {v(T+k)}, {v(x0)}, {v(x1)}")
    for k in range(4):
        x0, x1 = V_SC+2*k, V_SC+2*k+1
        A(f"v_lshlrev_b32 {v(x0)}, 16, {v(T+k)}")
        A(f"v_and_b32 {v(x1)}, 0xffff0000, {v(T+k)}")
    for k in range(8): A(f"v_mul_f32 {v(V_SC+k)}, {F32_SCALE:#x}, {v(V_SC+k)}")
    for k in range(4):
        x0, x1 = V_SC+2*k, V_SC+2*k+1
        A(f"v_cvt_pk_bf16_f32 {v(T+k)}, {v(x0)}, {v(x1)}")
    for k in range(4):
        x0, x1 = V_SC+2*k, V_SC+2*k+1
        A(f"v_lshlrev_b32 {v(x0)}, 16, {v(T+k)}")
        A(f"v_and_b32 {v(x1)}, 0xffff0000, {v(T+k)}")
    A(f"v_max3_f32 {v(V_MW)}, {v(V_SC)}, {v(V_SC+1)}, {v(V_SC+2)}")
    A(f"v_max3_f32 {v(V_MW)}, {v(V_MW)}, {v(V_SC+3)}, {v(V_SC+4)}")
    A(f"v_max3_f32 {v(V_MW)}, {v(V_MW)}, {v(V_SC+5)}, {v(V_SC+6)}")
    A(f"v_max_f32 {v(V_MW)}, {v(V_MW)}, {v(V_SC+7)}")
    allreduce(A, "v_max_f32", V_MW, T+8)
    for k in range(8): A(f"v_sub_f32 {v(V_SC+k)}, {v(V_SC+k)}, {v(V_MW)}")
    for k in range(8): A(f"v_mul_f32 {v(V_SC+k)}, {F32_LOG2E:#x}, {v(V_SC+k)}")
    for k in range(8): A(f"v_exp_f32 {v(V_SC+k)}, {v(V_SC+k)}")
    A.nop(1)
    A(f"v_add_f32 {v(V_LW)}, {v(V_SC)}, {v(V_SC+1)}")
    for k in range(2, 8): A(f"v_add_f32 {v(V_LW)}, {v(V_LW)}, {v(V_SC+k)}")
    for k in range(8): A(f"v_cvt_pk_bf16_f32 {v(V_SC+k)}, {v(V_SC+k)}, {v(V_SC+k)}")
    allreduce(A, "v_add_f32", V_LW, T+8)
    A(f"s_lshl_b32 {s(S_T1)}, {s(S_BH)}, 6")
    A(f"s_lshl_b32 {s(S_T3)}, {s(S_HALF)}, 2")
    A(f"s_add_u32 {s(S_T3)}, {s(S_T3)}, {s(S_W)}")
    A(f"s_lshl_b32 {s(S_T3)}, {s(S_T3)}, 3")
    A(f"s_add_u32 {s(S_T1)}, {s(S_T1)}, {s(S_T3)}")
    A(f"s_add_u32 {s(S_T1)}, {s(S_T1)}, {ST_OFF}")
    A(f"v_mov_b32 {v(T)}, {v(V_MW)}\nv_mov_b32 {v(T+1)}, {v(V_LW)}\nv_mov_b32 {v(T+2)}, 0")
    A("s_mov_b64 exec, 1")
    A(f"buffer_store_dwordx2 {v(T,2)}, {v(T+2)}, {s(R_WS,4)}, {s(S_T1)} offen sc0 sc1")
    A("s_mov_b64 exec, -1")
    def setpc_(k):
        A(f"v_mov_b32 {v(V_PC0)}, {v(V_SC+2*k)}\nv_mov_b32 {v(V_PC1)}, {v(V_SC+2*k+1)}")
    for i in range(4): A(f"v_mov_b32 {v(V_O+i)}, 0")
    setpc_(0)
    call("L_vbody"); setpc_(1)
    A(f"s_lshl_b32 {s(S_T1)}, {s(S_H)}, 1")
    A(f"s_add_u32 {s(S_T1)}, {s(S_T1)}, {s(S_HALF)}")
    A(f"s_mul_i32 {s(S_T4)}, {s(S_T1)}, 27")
    A(f"s_lshl_b32 {s(S_T3)}, {s(S_W)}, 2")
    A(f"s_add_u32 {s(S_T1)}, {s(S_T4)}, {s(S_T3)}")
    A(f"s_mul_i32 {s(S_T2)}, {s(S_T1)}, 1280")
    for cp in range(2):
        for u in range(5):
            A(f"buffer_load_dwordx4 {a(A_WD+4*(cp*5+u),4)}, {v(V_WOOFF)}, {s(R_WD,4)}, {s(S_T2)} offen offset:{256*u}{NTW}")
        if cp == 0: A(f"s_add_u32 {s(S_T2)}, {s(S_T2)}, {16*1280}")
    GV = T + 60
    G = T + 40
    A(f"v_lshl_add_u32 {v(GV)}, {v(V_C)}, 4, {v(V_SG)}")
    A(f"v_add_u32 {v(GV)}, {s(S_T3)}, {v(GV)}")
    A(f"v_cmp_gt_u32 vcc, 27, {v(GV)}")
    A(f"v_add_u32 {v(GV)}, {s(S_T4)}, {v(GV)}")
    A(f"v_lshlrev_b32 {v(GV)}, 2, {v(GV)}")
    A(f"s_mul_i32 {s(S_T1)}, {s(S_B)}, 6912")
    A(f"v_add_u32 {v(GV)}, {s(S_T1)}, {v(GV)}")
    A(f"v_mov_b32 {v(T)}, 0x7ffffff0")
    A(f"v_cndmask_b32 {v(GV)}, {v(T)}, {v(GV)}, vcc")
    SV = T + 61
    A(f"v_and_b32 {v(SV)}, 7, {v(V_LANE)}")
    A(f"v_lshlrev_b32 {v(SV)}, 3, {v(SV)}")
    def gather():
        for k in range(8):
            A(f"s_mov_b32 {s(S_T1)}, {F_OFF + k*27648}")
            A(f"buffer_load_dword {v(G+k)}, {v(GV)}, {s(R_WS,4)}, {s(S_T1)} offen sc1")
    def gather_st():
        A(f"s_lshl_b32 {s(S_T1)}, {s(S_BH)}, 6")
        A(f"s_add_u32 {s(S_T1)}, {s(S_T1)}, {ST_OFF}")
        A(f"buffer_load_dwordx2 {v(G+8,2)}, {v(SV)}, {s(R_WS,4)}, {s(S_T1)} offen sc1")
    gather(); gather_st()
    A(f"s_mul_i32 {s(S_T1)}, {s(S_ID)}, 205")
    A(f"s_lshr_b32 {s(S_C1)}, {s(S_T1)}, 12")
    A(f"s_mul_i32 {s(S_T1)}, {s(S_C1)}, 20")
    A(f"s_sub_u32 {s(S_C2)}, {s(S_ID)}, {s(S_T1)}")
    XO = T + 62
    A(f"v_and_b32 {v(T)}, 1, {v(V_SG)}")
    A(f"v_lshlrev_b32 {v(T)}, 1, {v(T)}")
    A(f"v_lshrrev_b32 {v(T+1)}, 1, {v(V_SG)}")
    A(f"v_add_u32 {v(T)}, {v(T)}, {v(T+1)}")
    A(f"v_and_b32 {v(T+1)}, 7, {v(V_LANE)}")
    A(f"v_lshl_add_u32 {v(T)}, {v(T+1)}, 2, {v(T)}")
    A(f"s_lshl_b32 {s(S_T1)}, {s(S_C2)}, 5")
    A(f"s_mul_i32 {s(S_T3)}, {s(S_C1)}, 640")
    A(f"s_add_u32 {s(S_T1)}, {s(S_T1)}, {s(S_T3)}")
    A(f"v_add_lshl_u32 {v(V_F1OFF)}, {v(T)}, {s(S_T1)}, 1")
    A(f"buffer_load_ushort {v(V_CX)}, {v(V_F1OFF)}, {s(R_X,4)}, 0 offen")
    call("L_vbody"); setpc_(2)
    def chk_g():
        A(f"v_max_u32 {v(T)}, {v(G)}, {v(G+1)}")
        A(f"v_max3_u32 {v(T)}, {v(T)}, {v(G+2)}, {v(G+3)}")
        A(f"v_max3_u32 {v(T)}, {v(T)}, {v(G+4)}, {v(G+5)}")
        A(f"v_max3_u32 {v(T)}, {v(T)}, {v(G+6)}, {v(G+7)}")
        A(f"v_max3_u32 {v(T)}, {v(T)}, {v(G+8)}, {v(G+9)}")
        A(f"v_cmp_eq_u32 vcc, -1, {v(T)}")
        A.nop(5)
    def reload_g():
        gather(); gather_st()
    spin_check(chk_g, reload_g)
    g_, u_, z_, t_ = T, T+1, T+2, T+3
    A(f"v_add_f32 {v(g_)}, {v(G)}, {v(G+2)}\nv_add_f32 {v(g_)}, {v(g_)}, {v(G+4)}\nv_add_f32 {v(g_)}, {v(g_)}, {v(G+6)}")
    A(f"v_add_f32 {v(u_)}, {v(G+1)}, {v(G+3)}\nv_add_f32 {v(u_)}, {v(u_)}, {v(G+5)}\nv_add_f32 {v(u_)}, {v(u_)}, {v(G+7)}")
    rbf(A, g_, t_); rbf(A, u_, t_)
    A(f"v_mul_f32 {v(z_)}, {v(g_)}, {v(g_)}")
    A(f"v_mul_f32 {v(z_)}, 0x3d372713, {v(z_)}")
    A(f"v_add_f32 {v(z_)}, 1.0, {v(z_)}")
    A(f"v_mul_f32 {v(z_)}, {v(z_)}, {v(g_)}")
    A(f"v_mul_f32 {v(z_)}, 0xc0135761, {v(z_)}")
    A(f"v_exp_f32 {v(z_)}, {v(z_)}")
    A.nop(1)
    A(f"v_add_f32 {v(z_)}, 1.0, {v(z_)}")
    A(f"v_rcp_f32 {v(z_)}, {v(z_)}")
    A.nop(1)
    A(f"v_mul_f32 {v(z_)}, {v(z_)}, {v(g_)}")
    rbf(A, z_, t_)
    A(f"v_mul_f32 {v(z_)}, {v(z_)}, {v(u_)}")
    A(f"v_cvt_pk_bf16_f32 {v(z_)}, {v(z_)}, {v(z_)}")
    A.nop(2)
    for cp in range(2):
        dst = V_A0 if cp == 0 else V_A1
        for k in range(4):
            A(f"v_and_b32_dpp {v(dst+k)}, {v(z_)}, {v(V_ML+k)} row_newbcast:{cp} row_mask:0xf bank_mask:0xf")
    A.nop(2)
    for cp in range(2):
        dst = V_A0 if cp == 0 else V_A1
        for u in range(5):
            c = "0" if cp == 0 else a(A_Y+4*u, 4)
            A(f"v_mfma_f32_16x16x32_bf16 {a(A_Y+4*u,4)}, {v(dst,4)}, {a(A_WD+4*(cp*5+u),4)}, {c}")
    m_, l_, mg = G+8, G+9, T+4
    A(f"v_mov_b32 {v(mg)}, {v(m_)}")
    A.nop(2)
    A(f"v_max_f32_dpp {v(mg)}, {v(mg)}, {v(mg)} quad_perm:[1,0,3,2] row_mask:0xf bank_mask:0xf")
    A.nop(2)
    A(f"v_max_f32_dpp {v(mg)}, {v(mg)}, {v(mg)} quad_perm:[2,3,0,1] row_mask:0xf bank_mask:0xf")
    A.nop(2)
    A(f"v_max_f32_dpp {v(mg)}, {v(mg)}, {v(mg)} row_half_mirror row_mask:0xf bank_mask:0xf")
    A(f"v_sub_f32 {v(m_)}, {v(m_)}, {v(mg)}")
    A(f"v_mul_f32 {v(m_)}, {F32_LOG2E:#x}, {v(m_)}")
    A(f"v_exp_f32 {v(m_)}, {v(m_)}")
    A.nop(1)
    A(f"v_mul_f32 {v(l_)}, {v(l_)}, {v(m_)}")
    A.nop(2)
    A(f"v_add_f32_dpp {v(l_)}, {v(l_)}, {v(l_)} quad_perm:[1,0,3,2] row_mask:0xf bank_mask:0xf")
    A.nop(2)
    A(f"v_add_f32_dpp {v(l_)}, {v(l_)}, {v(l_)} quad_perm:[2,3,0,1] row_mask:0xf bank_mask:0xf")
    A.nop(2)
    A(f"v_add_f32_dpp {v(l_)}, {v(l_)}, {v(l_)} row_half_mirror row_mask:0xf bank_mask:0xf")
    A(f"v_sub_f32 {v(V_FAC)}, {v(V_MW)}, {v(mg)}")
    A(f"v_mul_f32 {v(V_FAC)}, {F32_LOG2E:#x}, {v(V_FAC)}")
    A(f"v_exp_f32 {v(V_FAC)}, {v(V_FAC)}")
    A(f"v_rcp_f32 {v(l_)}, {v(l_)}")
    A.nop(1)
    A(f"v_mul_f32 {v(V_FAC)}, {v(V_FAC)}, {v(l_)}")
    A(f"v_lshlrev_b32 {v(V_CX)}, 16, {v(V_CX)}")
    call("L_vbody"); setpc_(3)
    call("L_vbody")
    A.nop(8)
    for i in range(4): A(f"v_mul_f32 {v(V_O+i)}, {v(V_O+i)}, {v(V_FAC)}")
    if o["dump"] == "o": dump(A, [V_O, V_O+1, V_O+2, V_O+3, V_FAC, V_MW, V_LW])
    OA = T
    A(f"v_and_b32 {v(OA)}, 1, {v(V_SG)}")
    A(f"v_lshlrev_b32 {v(OA)}, 2, {v(OA)}")
    A(f"v_lshl_add_u32 {v(OA)}, {v(V_C)}, 3, {v(OA)}")
    A(f"s_lshl_b32 {s(S_T1)}, {s(S_W)}, 7")
    A(f"v_add_lshl_u32 {v(OA)}, {v(OA)}, {s(S_T1)}, 2")
    A("s_mov_b32 exec_hi, 0")
    A(f"ds_write_b128 {v(OA)}, {v(V_O,4)} offset:{L_OP}")
    A("s_mov_b32 exec_hi, -1")
    A(f"v_and_b32 {v(T+1)}, 7, {v(V_C)}")
    A(f"v_lshl_add_u32 {v(T+1)}, {v(T+1)}, 2, {v(V_SG)}")
    A(f"s_lshl_b32 {s(S_T1)}, {s(S_W)}, 5")
    A(f"v_add_lshl_u32 {v(T+1)}, {v(T+1)}, {s(S_T1)}, 2")
    A("s_waitcnt lgkmcnt(0)")
    A("s_barrier")
    for w in range(4): A(f"ds_read_b32 {v(T+4+w)}, {v(T+1)} offset:{L_OP + w*512}")
    A("s_waitcnt lgkmcnt(0)")
    A(f"v_add_f32 {v(T+4)}, {v(T+4)}, {v(T+5)}\nv_add_f32 {v(T+6)}, {v(T+6)}, {v(T+7)}\nv_add_f32 {v(T+4)}, {v(T+4)}, {v(T+6)}")
    PH, PL = T+8, T+9
    A(f"v_cvt_pk_bf16_f32 {v(PH)}, {v(T+4)}, {v(T+4)}")
    A(f"v_and_b32 {v(T+5)}, 0xffff0000, {v(PH)}")
    A(f"v_sub_f32 {v(T+5)}, {v(T+4)}, {v(T+5)}")
    A(f"v_cvt_pk_bf16_f32 {v(PL)}, {v(T+5)}, {v(T+5)}")
    A.nop(2)
    def mkY(dst, tau):
        for k in range(4):
            A(f"v_and_b32_dpp {v(dst+k)}, {v(PH)}, {v(V_M+k)} row_newbcast:{tau} row_mask:0xf bank_mask:0x3")
            A(f"v_and_b32_dpp {v(dst+k)}, {v(PL)}, {v(V_M+k)} row_newbcast:{tau} row_mask:0xf bank_mask:0xc")
    mkY(V_A0, 0)
    for tau in range(8):
        cur, nxt = (V_A0, V_A1) if tau % 2 == 0 else (V_A1, V_A0)
        if tau + 1 < 8: mkY(nxt, tau + 1)
        else: A.nop(2)
        for u in range(5):
            A(f"v_mfma_f32_16x16x32_bf16 {a(A_Y+4*u,4)}, {v(cur,4)}, {a(A_W+4*(tau*5+u),4)}, {a(A_Y+4*u,4)}")
    YA = T + 10
    A(f"v_lshrrev_b32 {v(YA)}, 1, {v(V_SG)}")
    A(f"s_lshl_b32 {s(S_T1)}, {s(S_W)}, 1")
    A(f"v_add_u32 {v(YA)}, {s(S_T1)}, {v(YA)}")
    A(f"v_mul_u32_u24 {v(YA)}, 640, {v(YA)}")
    A(f"v_lshl_add_u32 {v(YA)}, {v(V_C)}, 3, {v(YA)}")
    A(f"v_and_b32 {v(T+11)}, 1, {v(V_SG)}")
    A(f"v_lshl_add_u32 {v(YA)}, {v(T+11)}, 2, {v(YA)}")
    A(f"v_lshlrev_b32 {v(YA)}, 2, {v(YA)}")
    A.nop(2)
    for u in range(5):
        A(f"ds_write_b128 {v(YA)}, {a(A_Y+4*u,4)} offset:{L_YP + 512*u}")
    A("s_waitcnt lgkmcnt(0)")
    A("s_barrier")
    A(f"s_cmp_eq_u32 {s(S_W)}, 3")
    A("s_cbranch_scc1 L_cons")
    A(f"v_cmp_gt_u32 vcc, 160, v0")
    A(f"s_and_saveexec_b64 {s(S_EX,2)}, vcc")
    A("s_cbranch_execz L_end")
    A(f"v_lshlrev_b32 {v(T)}, 4, v0")
    for k in range(8): A(f"ds_read_b128 {v(T+4+4*k,4)}, {v(T)} offset:{L_YP + 2560*k}")
    A(f"v_lshrrev_b32 {v(T+1)}, 3, v0")
    A(f"v_lshlrev_b32 {v(T+1)}, 13, {v(T+1)}")
    A(f"v_and_b32 {v(T+2)}, 7, v0")
    A(f"v_lshl_add_u32 {v(T+1)}, {v(T+2)}, 4, {v(T+1)}")
    A(f"s_mul_i32 {s(S_T1)}, {s(S_B)}, {20*8192}")
    A(f"s_and_b32 {s(S_T3)}, {s(S_ID)}, 63")
    A(f"s_lshl_b32 {s(S_T3)}, {s(S_T3)}, 7")
    A(f"s_add_u32 {s(S_T1)}, {s(S_T1)}, {s(S_T3)}")
    A("s_waitcnt lgkmcnt(0)")
    for e in range(4):
        A(f"v_add_f32 {v(T+4+e)}, {v(T+4+e)}, {v(T+8+e)}")
        A(f"v_add_f32 {v(T+12+e)}, {v(T+12+e)}, {v(T+16+e)}")
        A(f"v_add_f32 {v(T+20+e)}, {v(T+20+e)}, {v(T+24+e)}")
        A(f"v_add_f32 {v(T+28+e)}, {v(T+28+e)}, {v(T+32+e)}")
    for e in range(4):
        A(f"v_add_f32 {v(T+4+e)}, {v(T+4+e)}, {v(T+12+e)}")
        A(f"v_add_f32 {v(T+20+e)}, {v(T+20+e)}, {v(T+28+e)}")
    for e in range(4):
        A(f"v_add_f32 {v(T+4+e)}, {v(T+4+e)}, {v(T+20+e)}")
    A(f"buffer_store_dwordx4 {v(T+4,4)}, {v(T+1)}, {s(R_WS,4)}, {s(S_T1)} offen sc0 sc1")
    A("s_endpgm")
    A.label("L_cons")
    A(f"s_cmp_lt_u32 {s(S_ID)}, 80")
    A("s_cbranch_scc0 L_end")
    A(f"v_lshlrev_b32 {v(T)}, 4, {v(V_LANE)}")
    A(f"s_lshl_b32 {s(S_T2)}, {s(S_ID)}, 13")
    Yv = T + 4
    def yload():
        A(f"s_mov_b32 {s(S_T1)}, {s(S_T2)}")
        for j in range(8):
            off = (j % 4) * 1024
            A(f"buffer_load_dwordx4 {v(Yv+4*j,4)}, {v(T)}, {s(R_WS,4)}, {s(S_T1)} offen offset:{off} sc1")
            if j == 3: A(f"s_add_u32 {s(S_T1)}, {s(S_T1)}, 4096")
    yload()
    A("s_waitcnt vmcnt(0)")
    def chk_y():
        A(f"v_max3_u32 {v(T+1)}, {v(Yv)}, {v(Yv+1)}, {v(Yv+2)}")
        for k in range(3, 31, 2):
            A(f"v_max3_u32 {v(T+1)}, {v(T+1)}, {v(Yv+k)}, {v(Yv+k+1)}")
        A(f"v_max_u32 {v(T+1)}, {v(T+1)}, {v(Yv+31)}")
        A(f"v_cmp_eq_u32 vcc, -1, {v(T+1)}")
        A.nop(5)
    spin_check(chk_y, yload)
    for step in (16, 8, 4):
        for k in range(step):
            A(f"v_add_f32 {v(Yv+k)}, {v(Yv+k)}, {v(Yv+k+step)}")
    a0, a1, a2, a3 = Yv, Yv+1, Yv+2, Yv+3
    A.nop(2)
    A(f"v_permlane32_swap_b32 {v(a0)}, {v(a1)}")
    A(f"v_permlane32_swap_b32 {v(a2)}, {v(a3)}")
    A.nop(2)
    A(f"v_add_f32 {v(a0)}, {v(a0)}, {v(a1)}")
    A(f"v_add_f32 {v(a2)}, {v(a2)}, {v(a3)}")
    A.nop(2)
    A(f"v_permlane16_swap_b32 {v(a0)}, {v(a2)}")
    A.nop(2)
    A(f"v_add_f32 {v(a0)}, {v(a0)}, {v(a2)}")
    A.nop(2)
    A(f"v_add_f32_dpp {v(a0)}, {v(a0)}, {v(a0)} row_ror:8 row_mask:0xf bank_mask:0xf")
    A(f"v_add_f32 {v(a0)}, {v(a0)}, {v(V_CX)}")
    A(f"v_cvt_pk_bf16_f32 {v(a0)}, {v(a0)}, {v(a0)}")
    A("s_mov_b32 exec_lo, 0x00ff00ff\ns_mov_b32 exec_hi, 0x00ff00ff")
    A(f"buffer_store_short {v(a0)}, {v(V_F1OFF)}, {s(R_OUT,4)}, 0 offen")
    A.label("L_end")
    A("s_endpgm")
    A.label("L_kbody")
    for i in range(32):
        n = i % 16
        b = V_BUF + 4*i
        A("s_waitcnt vmcnt(31)")
        A(f"v_dot2_f32_bf16 {v(V_ACC+n)}, {v(b)}, {v(V_Q)}, 0")
        for k in range(1, 4):
            A(f"v_dot2_f32_bf16 {v(V_ACC+n)}, {v(b+k)}, {v(V_Q+k)}, {v(V_ACC+n)}")
        A(f"buffer_load_dwordx4 {v(b,4)}, {v(V_KOFF)}, {s(R_CUR,4)}, {s(S_SOFF)} offen{NTK}")
        A(f"s_add_u32 {s(S_SOFF)}, {s(S_SOFF)}, 4096")
        if n == 15:
            x = V_ACC
            A.nop(2)
            for t in range(8):
                A(f"v_add_f32_dpp {v(x+t)}, {v(x+t)}, {v(x+t)} row_ror:8 row_mask:0xf bank_mask:0x3")
                A(f"v_add_f32_dpp {v(x+t)}, {v(x+t+8)}, {v(x+t+8)} row_ror:8 row_mask:0xf bank_mask:0xc")
            for t in range(4):
                A(f"v_add_f32_dpp {v(x+t)}, {v(x+t)}, {v(x+t)} row_half_mirror row_mask:0xf bank_mask:0x5")
                A(f"v_add_f32_dpp {v(x+t)}, {v(x+t+4)}, {v(x+t+4)} row_half_mirror row_mask:0xf bank_mask:0xa")
            A.nop(2)
            for t in range(4):
                A(f"v_add_f32_dpp {v(x+t)}, {v(x+t)}, {v(x+t)} quad_perm:[2,3,0,1] row_mask:0xf bank_mask:0xf")
            A(f"v_cndmask_b32 {v(x)}, {v(x)}, {v(x+2)}, {s(S_M2,2)}")
            A(f"v_cndmask_b32 {v(x+1)}, {v(x+1)}, {v(x+3)}, {s(S_M2,2)}")
            A.nop(2)
            A(f"v_add_f32_dpp {v(x)}, {v(x)}, {v(x)} quad_perm:[1,0,3,2] row_mask:0xf bank_mask:0xf")
            A(f"v_add_f32_dpp {v(x+1)}, {v(x+1)}, {v(x+1)} quad_perm:[1,0,3,2] row_mask:0xf bank_mask:0xf")
            dst = V_PC0 if i == 15 else V_PC1
            A(f"v_cndmask_b32 {v(dst)}, {v(x)}, {v(x+1)}, {s(S_M1,2)}")
    A(f"s_setpc_b64 {s(S_RET,2)}")
    A.label("L_vbody")
    for i in range(32):
        n = i % 16
        b = V_BUF + 4*i
        P = V_PC0 if i < 16 else V_PC1
        for k in range(4):
            A(f"v_and_b32_dpp {v(V_A0+k)}, {v(P)}, {v(V_M+k)} row_newbcast:{n} row_mask:0xf bank_mask:0xf")
        A("s_waitcnt vmcnt(31)")
        A.nop(1)
        A(f"v_mfma_f32_16x16x32_bf16 {v(V_O,4)}, {v(V_A0,4)}, {v(b,4)}, {v(V_O,4)}")
        A(f"buffer_load_dwordx4 {v(b,4)}, {v(V_KOFF)}, {s(R_CUR,4)}, {s(S_SOFF)} offen{NTK}")
        A(f"s_add_u32 {s(S_SOFF)}, {s(S_SOFF)}, 4096")
    A(f"s_setpc_b64 {s(S_RET,2)}")
    A.L.append(f""".section .rodata,"a"
.p2align 6
.amdhsa_kernel {NAME}
  .amdhsa_next_free_vgpr 512
  .amdhsa_next_free_sgpr {NSGPR}
  .amdhsa_accum_offset 256
  .amdhsa_group_segment_fixed_size 0
  .amdhsa_kernarg_size 96
  .amdhsa_user_sgpr_count 2
  .amdhsa_user_sgpr_kernarg_segment_ptr 1
  .amdhsa_system_sgpr_workgroup_id_x 1
  .amdhsa_float_denorm_mode_32 3
  .amdhsa_float_denorm_mode_16_64 3
.end_amdhsa_kernel""")
    return A.text()

def dump(A, regs):
    A("s_waitcnt vmcnt(0) lgkmcnt(0)")
    A(f"s_mov_b32 s60, s{P_WS}\ns_mov_b32 s61, s{P_WS+1}\ns_mov_b32 s62, 0x10000000\ns_mov_b32 s63, 0x20000")
    A(f"s_lshl_b32 s{S_T1}, s{S_ID}, 10")
    A(f"s_add_u32 s{S_T1}, s{S_T1}, {DBG_OFF}")
    A(f"v_lshlrev_b32 v79, 2, v0")
    for k, r in enumerate(regs):
        A(f"buffer_store_dword v{r}, v79, s[60:63], s{S_T1} offen")
        A(f"s_add_u32 s{S_T1}, s{S_T1}, {65536*4}")
    A("s_waitcnt vmcnt(0)")
    A("s_endpgm")

if __name__ == "__main__":
    import json
    opts = json.loads(sys.argv[2]) if len(sys.argv) > 2 else {}
    open(sys.argv[1], "w").write(gen(opts))
```

```python
import sys

NAME = "parallel_sum__gqa_block_cached__geglu_ffn__decode_kernel"

class Asm:
    def __init__(self):
        self.L = []
        self.fifo = 0
    def __call__(self, s):
        for line in s.split("\n"):
            t = line.strip()
            if not t: continue
            self.L.append(t if t.endswith(":") else "  " + t)
    def label(self, s): self.L.append(s + ":")
    def nop(self, n):
        while n > 0:
            k = min(n, 16)
            self.L.append(f"  s_nop {k-1}")
            n -= k
    def vm(self, s):
        self(s)
        self.fifo += 1
        return self.fifo - 1
    def wait_vm(self, idx, extra=""):
        n = min(self.fifo - 1 - idx, 63)
        self(f"s_waitcnt vmcnt({n}){extra}")
    def text(self): return "\n".join(self.L) + "\n"

def v(i, n=1): return f"v{i}" if n == 1 else f"v[{i}:{i+n-1}]"
def a(i, n=1): return f"a{i}" if n == 1 else f"a[{i}:{i+n-1}]"
def s(i, n=1): return f"s{i}" if n == 1 else f"s[{i}:{i+n-1}]"

Y_OFF   = 0
Y_SIZE  = 4*20*64*32*4
F_OFF   = Y_OFF + Y_SIZE
F_SIZE  = 4*2*4*1728*4
ST_OFF  = F_OFF + F_SIZE
ST_SIZE = 128*8*8
WS_SIZE = ST_OFF + ST_SIZE
DBG_OFF = 1 << 20
assert WS_SIZE <= 256*4096

L_XN = 0
L_QP = 10240
L_FP = 12288
L_OP = 20480
L_YP = 22528
LDS_SIZE = 43008

P_X, P_K, P_V, P_WQ, P_WO, P_BX, P_WG, P_WU, P_WD, P_OUT, P_DBG, P_WS = [4+2*i for i in range(12)]
R_K, R_V, R_CUR, R_WQ, R_WO, R_F1, R_WD, R_WS, R_X, R_OUT, R_DBG = [28+4*i for i in range(11)]
S_W, S_H, S_HALF, S_B, S_BH, S_SOFF, S_T0, S_T1, S_T2, S_T3 = range(72, 82)
S_RET = 82
S_M2 = 84
S_M1 = 86
S_FVAL = 88
S_SPIN = 90
S_ID = 91
S_WOOFF = 92
S_C1 = 93
S_C2 = 94
S_T4 = 95
S_EX = 96
NSGPR = 100

V_TID, V_LANE, V_C, V_SG, V_KOFF, V_WQOFF, V_WOOFF, V_F1OFF, V_FV, V_CX, V_FAC, V_MW, V_LW, V_POLL, V_PC0, V_PC1 = range(16)
V_T = 16
V_O = 80
V_A0 = 84
V_A1 = 88
V_ML = 92
V_M = 96
V_Q = 100
V_SC = 104
V_ACC = 112
V_BUF = 128
D = 32

A_W = 0
A_WD = 160
A_Y = 200
A_F = 220
A_Q = 236

SPIN_MAX = 100000
F32_INV640 = 0x3acccccd
F32_EPS = 0x3727c5ac
F32_SCALE = 0x3db504f3
F32_LOG2E = 0x3fb8aa3b

def allreduce(A, op, x, tmp):
    for r in (8, 4, 2, 1):
        A.nop(2)
        A(f"{op}_dpp {v(x)}, {v(x)}, {v(x)} row_ror:{r} row_mask:0xf bank_mask:0xf")
    A(f"v_mov_b32 {v(tmp)}, {v(x)}")
    A.nop(2)
    A(f"v_permlane16_swap_b32 {v(x)}, {v(tmp)}")
    A.nop(2)
    A(f"{op} {v(x)}, {v(x)}, {v(tmp)}")
    A(f"v_mov_b32 {v(tmp)}, {v(x)}")
    A.nop(2)
    A(f"v_permlane32_swap_b32 {v(x)}, {v(tmp)}")
    A.nop(2)
    A(f"{op} {v(x)}, {v(x)}, {v(tmp)}")

def rbf(A, x, tmp):
    A(f"v_cvt_pk_bf16_f32 {v(tmp)}, {v(x)}, {v(x)}")
    A(f"v_and_b32 {v(x)}, 0xffff0000, {v(tmp)}")

def gen(opts=None):
    o = dict(nt_kv=" nt", nt_w=" nt", dump=None, stamp=False, noround=False)
    if opts: o.update(opts)
    NTK = o["nt_kv"]; NTW = o["nt_w"]
    A = Asm()
    T = V_T
    V_ST = T + 58
    nst = [0]
    def stamp():
        if not o["stamp"]: return
        A("s_memrealtime s[98:99]")
        A("s_waitcnt lgkmcnt(0)")
        A(f"v_writelane_b32 {v(V_ST)}, s98, {nst[0]}")
        nst[0] += 1
    def stamp_out():
        if not o["stamp"]: return
        stamp()
        A(f"s_lshl_b32 {s(S_T1)}, {s(S_ID)}, 2")
        A(f"s_add_u32 {s(S_T1)}, {s(S_T1)}, {s(S_W)}")
        A(f"s_lshl_b32 {s(S_T1)}, {s(S_T1)}, 6")
        A(f"s_add_u32 {s(S_T1)}, {s(S_T1)}, {DBG_OFF}")
        A(f"s_mov_b32 s60, s{P_WS}\ns_mov_b32 s61, s{P_WS+1}\ns_mov_b32 s62, 0x10000000\ns_mov_b32 s63, 0x20000")
        A("s_mov_b64 exec, 0xffff")
        A(f"v_lshlrev_b32 {v(T+57)}, 2, {v(V_LANE)}")
        A(f"buffer_store_dword {v(V_ST)}, {v(T+57)}, s[60:63], {s(S_T1)} offen")
        A(f"v_sub_u32 {v(T+56)}, 0, {v(V_ST)}")
        A(f"v_cmp_eq_u32 vcc, 0, {v(V_LANE)}")
        A("s_nop 1")
        A(f"v_cndmask_b32 {v(T+56)}, {v(V_ST)}, {v(T+56)}, vcc")
        A(f"v_add_u32 {v(T+57)}, 16, {v(T+57)}")
        A("s_mov_b64 exec, 0xfff")
        A(f"buffer_atomic_umax {v(T+56)}, {v(T+57)}, {s(R_DBG,4)}, 0 offen sc1")
    A.L.append(f"; @launch grid=(256,1,1) block=(256,1,1) lds={LDS_SIZE}")
    A.L.append('.amdgcn_target "amdgcn-amd-amdhsa--gfx950"')
    A.L.append(".text")
    A.L.append(f".globl {NAME}")
    A.L.append(".p2align 8")
    A.L.append(f".type {NAME},@function")
    A.label(NAME)
    A("s_cmp_ge_u32 s2, 256")
    A("s_cbranch_scc1 L_end")
    if o["stamp"]: A(f"v_mov_b32 {v(V_ST)}, 0")
    stamp()
    A("s_load_dwordx16 s[4:19], s[0:1], 0")
    A("s_load_dwordx8 s[20:27], s[0:1], 64")
    A(f"v_and_b32 {v(V_LANE)}, 63, v0")
    A(f"v_lshrrev_b32 {v(T)}, 6, v0")
    A(f"s_mov_b32 {s(S_ID)}, s2")
    A(f"v_readfirstlane_b32 {s(S_W)}, {v(T)}")
    A(f"s_and_b32 {s(S_H)}, s2, 31")
    A(f"s_bfe_u32 {s(S_HALF)}, s2, 0x10005")
    A(f"s_lshr_b32 {s(S_B)}, s2, 6")
    A(f"s_lshl_b32 {s(S_T0)}, {s(S_B)}, 5")
    A(f"s_add_u32 {s(S_BH)}, {s(S_T0)}, {s(S_H)}")
    A(f"v_and_b32 {v(V_C)}, 15, {v(V_LANE)}")
    A(f"v_lshrrev_b32 {v(V_SG)}, 4, {v(V_LANE)}")
    A(f"v_lshlrev_b32 {v(T+1)}, 4, {v(V_LANE)}")
    A(f"v_lshlrev_b32 {v(T+2)}, 4, {v(V_C)}")
    A(f"s_lshl_b32 {s(S_T0)}, {s(S_BH)}, 20")
    A(f"s_lshl_b32 {s(S_T1)}, {s(S_HALF)}, 19")
    A(f"s_add_u32 {s(S_T0)}, {s(S_T0)}, {s(S_T1)}")
    A(f"s_lshl_b32 {s(S_T1)}, {s(S_W)}, 10")
    A(f"v_add_u32 {v(V_KOFF)}, {s(S_T1)}, {v(T+1)}")
    A(f"v_lshl_add_u32 {v(V_WQOFF)}, {v(V_SG)}, 13, {v(T+2)}")
    A(f"v_mul_u32_u24 {v(V_WOOFF)}, 1280, {v(V_SG)}")
    A(f"v_add_u32 {v(V_WOOFF)}, {v(V_WOOFF)}, {v(T+2)}")
    A(f"v_lshlrev_b32 {v(T+3)}, 4, v0")
    A(f"v_lshlrev_b32 {v(T+8)}, 2, {v(V_LANE)}")
    for i in range(4): A(f"v_mov_b32 {v(T+4+i)}, -1")
    A("s_waitcnt lgkmcnt(0)")
    def srd(r, p, size, add=None):
        if add is None:
            A(f"s_mov_b32 {s(r)}, {s(p)}")
            A(f"s_mov_b32 {s(r+1)}, {s(p+1)}")
        else:
            A(f"s_add_u32 {s(r)}, {s(p)}, {s(add)}")
            A(f"s_addc_u32 {s(r+1)}, {s(p+1)}, 0")
        A(f"s_mov_b32 {s(r+2)}, {size}")
        A(f"s_mov_b32 {s(r+3)}, 0x20000")
    srd(R_X, P_X, 5120)
    srd(R_WS, P_WS, WS_SIZE)
    srd(R_WQ, P_WQ, 640*8192)
    A(f"s_lshl_b32 {s(S_T1)}, s2, 12")
    A.vm(f"buffer_store_dwordx4 {v(T+4,4)}, {v(T+3)}, {s(R_WS,4)}, {s(S_T1)} offen sc0 sc1")
    VX = T + 10
    A(f"s_mul_i32 {s(S_T1)}, {s(S_W)}, 1280")
    xl = []
    for k in range(5):
        xl.append(A.vm(f"buffer_load_dword {v(VX+k)}, {v(T+8)}, {s(R_X,4)}, {s(S_T1)} offen offset:{256*k}"))
    A(f"s_mul_i32 {s(S_T2)}, {s(S_W)}, {40*32768}")
    A(f"s_lshl_b32 {s(S_T3)}, {s(S_H)}, 8")
    A(f"s_add_u32 {s(S_T2)}, {s(S_T2)}, {s(S_T3)}")
    wq_idx = []
    def wq_load():
        t = len(wq_idx)
        wq_idx.append(A.vm(f"buffer_load_dwordx4 {a(A_W+4*t,4)}, {v(V_WQOFF)}, {s(R_WQ,4)}, {s(S_T2)} offen{NTW}"))
        A(f"s_add_u32 {s(S_T2)}, {s(S_T2)}, 32768")
    for t in range(10): wq_load()
    srd(R_K, P_K, 1 << 19, add=S_T0)
    srd(R_V, P_V, 1 << 19, add=S_T0)
    srd(R_WO, P_WO, 4096*1280)
    srd(R_WD, P_WD, 1728*1280)
    srd(R_OUT, P_OUT, 5120)
    srd(R_DBG, P_DBG, 256)
    for i in range(4): A(f"s_mov_b32 {s(R_CUR+i)}, {s(R_K+i)}")
    A(f"s_bitcmp1_b32 {s(S_ID)}, 2")
    A(f"s_cselect_b32 {s(R_F1)}, {s(P_WU)}, {s(P_WG)}")
    A(f"s_cselect_b32 {s(R_F1+1)}, {s(P_WU+1)}, {s(P_WG+1)}")
    A(f"s_cmp_lt_u32 {s(S_ID)}, 216")
    A(f"s_cselect_b32 {s(R_F1+2)}, {640*3456}, 0")
    A(f"s_mov_b32 {s(R_F1+3)}, 0x20000")
    t0, t1, t2 = T+16, T+17, T+18
    A(f"v_and_b32 {v(t0)}, 1, {v(V_LANE)}")
    A(f"v_cmp_eq_u32 vcc, 1, {v(t0)}")
    A(f"v_mov_b32 {v(t1)}, 0xffff")
    A(f"v_mov_b32 {v(t2)}, 0xffff0000")
    A(f"v_cndmask_b32 {v(t1)}, {v(t1)}, {v(t2)}, vcc")
    A(f"v_bfe_u32 {v(t0)}, {v(V_LANE)}, 1, 2")
    for t in range(4):
        A(f"v_cmp_eq_u32 vcc, {t}, {v(t0)}")
        A.nop(2)
        A(f"v_cndmask_b32 {v(V_M+t)}, 0, {v(t1)}, vcc")
    A(f"v_cmp_gt_u32 vcc, 8, {v(V_C)}")
    A.nop(2)
    for t in range(4):
        A(f"v_cndmask_b32 {v(V_ML+t)}, 0, {v(V_M+t)}, vcc")
    A(f"s_mov_b32 {s(S_M2)}, 0xcccccccc\ns_mov_b32 {s(S_M2+1)}, 0xcccccccc")
    A(f"s_mov_b32 {s(S_M1)}, 0xaaaaaaaa\ns_mov_b32 {s(S_M1+1)}, 0xaaaaaaaa")
    A(f"s_mov_b32 {s(S_FVAL)}, 0x00ff00ff\ns_mov_b32 {s(S_FVAL+1)}, 0xff00ff00")
    A(f"v_bfe_u32 {v(t0)}, {v(V_LANE)}, 3, 1")
    A(f"v_lshl_add_u32 {v(t0)}, {v(V_SG)}, 1, {v(t0)}")
    A(f"v_mul_u32_u24 {v(V_F1OFF)}, 3456, {v(t0)}")
    A(f"v_and_b32 {v(t1)}, 7, {v(V_LANE)}")
    A(f"v_lshl_add_u32 {v(V_F1OFF)}, {v(t1)}, 4, {v(V_F1OFF)}")
    A.wait_vm(xl[-1])
    F = T + 20
    DV = T + 32
    SUM, TMP, MEAN, MB, RS, SD, XA = T+44, T+45, T+46, T+47, T+48, T+49, T+50
    for k in range(5):
        A(f"v_lshlrev_b32 {v(F+2*k)}, 16, {v(VX+k)}")
        A(f"v_and_b32 {v(F+2*k+1)}, 0xffff0000, {v(VX+k)}")
    A(f"v_add_f32 {v(SUM)}, {v(F)}, {v(F+1)}")
    for k in range(2, 10): A(f"v_add_f32 {v(SUM)}, {v(SUM)}, {v(F+k)}")
    for _ in range(4): wq_load()
    allreduce(A, "v_add_f32", SUM, TMP)
    A(f"v_mul_f32 {v(MEAN)}, {F32_INV640:#x}, {v(SUM)}")
    for k in range(10): A(f"v_sub_f32 {v(DV+k)}, {v(F+k)}, {v(MEAN)}")
    A(f"v_mul_f32 {v(SUM)}, {v(DV)}, {v(DV)}")
    for k in range(1, 10): A(f"v_fmac_f32 {v(SUM)}, {v(DV+k)}, {v(DV+k)}")
    for _ in range(4): wq_load()
    allreduce(A, "v_add_f32", SUM, TMP)
    A(f"v_mul_f32 {v(SUM)}, {F32_INV640:#x}, {v(SUM)}")
    rbf(A, SUM, TMP)
    A(f"v_add_f32 {v(SUM)}, {F32_EPS:#x}, {v(SUM)}")
    rbf(A, SUM, TMP)
    A(f"v_sqrt_f32 {v(SD)}, {v(SUM)}")
    A.nop(1)
    A(f"v_rcp_f32 {v(RS)}, {v(SD)}")
    A(f"v_fma_f32 {v(TMP)}, -{v(SD)}, {v(SD)}, {v(SUM)}")
    A(f"v_mul_f32 {v(RS)}, 0.5, {v(RS)}")
    A(f"v_fmac_f32 {v(SD)}, {v(TMP)}, {v(RS)}")
    rbf(A, SD, TMP)
    A(f"v_rcp_f32 {v(RS)}, {v(SD)}")
    A(f"v_mov_b32 {v(MB)}, {v(MEAN)}")
    rbf(A, MB, TMP)
    for _ in range(4): wq_load()
    A(f"v_and_b32 {v(XA)}, 1, {v(V_LANE)}")
    A(f"v_mul_u32_u24 {v(XA)}, 320, {v(XA)}")
    A(f"v_lshrrev_b32 {v(TMP)}, 1, {v(V_LANE)}")
    A(f"v_add_lshl_u32 {v(XA)}, {v(XA)}, {v(TMP)}, 2")
    A(f"s_mul_i32 {s(S_T1)}, {s(S_W)}, 2560")
    A(f"v_add_u32 {v(XA)}, {s(S_T1)}, {v(XA)}")
    for k in range(5):
        d0, d1, pk, q0, q1, e0 = DV+0, DV+1, DV+2, DV+3+2*(k&1), DV+4+2*(k&1), DV+8
        A(f"v_sub_f32 {v(d0)}, {v(F+2*k)}, {v(MB)}")
        A(f"v_sub_f32 {v(d1)}, {v(F+2*k+1)}, {v(MB)}")
        A(f"v_cvt_pk_bf16_f32 {v(pk)}, {v(d0)}, {v(d1)}")
        A(f"v_lshlrev_b32 {v(d0)}, 16, {v(pk)}")
        A(f"v_and_b32 {v(d1)}, 0xffff0000, {v(pk)}")
        for (d, q) in ((d0, q0), (d1, q1)):
            A(f"v_mul_f32 {v(q)}, {v(d)}, {v(RS)}")
            A(f"v_fma_f32 {v(e0)}, -{v(q)}, {v(SD)}, {v(d)}")
            A(f"v_fmac_f32 {v(q)}, {v(e0)}, {v(RS)}")
            A(f"v_cvt_pk_bf16_f32 {v(q)}, {v(q)}, {v(q)}")
        A(f"ds_write_b32 {v(XA)}, {v(q0)} offset:{L_XN + 128*k}")
        A(f"ds_write_b32 {v(XA)}, {v(q1)} offset:{L_XN + 128*k + 640}")
        if k < 4:
            wq_load(); wq_load()
    A("s_waitcnt lgkmcnt(0)")
    A("s_barrier")
    stamp()
    A(f"s_cmp_eq_u32 {s(S_W)}, 0")
    A("s_cbranch_scc0 L_nosig")
    A(f"s_and_b32 {s(S_T1)}, {s(S_ID)}, 3")
    A(f"s_lshl_b32 {s(S_T1)}, {s(S_T1)}, 6")
    A(f"v_mov_b32 {v(DV)}, 0\nv_mov_b32 {v(DV+1)}, 1")
    A("s_mov_b64 exec, 1")
    A(f"buffer_atomic_add {v(DV+1)}, {v(DV)}, {s(R_DBG,4)}, {s(S_T1)} offen sc1")
    A("s_mov_b64 exec, -1")
    A.label("L_nosig")
    while len(wq_idx) < 40: wq_load()
    A(f"s_and_b32 {s(S_T1)}, {s(S_ID)}, 3")
    A(f"s_mul_i32 {s(S_T1)}, {s(S_T1)}, 160")
    A(f"s_mul_i32 {s(S_T3)}, {s(S_W)}, 40")
    A(f"s_add_u32 {s(S_C1)}, {s(S_T1)}, {s(S_T3)}")
    A(f"s_mul_i32 {s(S_T1)}, {s(S_C1)}, 3456")
    A(f"s_lshr_b32 {s(S_C2)}, {s(S_ID)}, 3")
    A(f"s_lshl_b32 {s(S_T3)}, {s(S_C2)}, 7")
    A(f"s_add_u32 {s(S_T1)}, {s(S_T1)}, {s(S_T3)}")
    f1_idx = []
    for tau in range(5):
        f1_idx.append(A.vm(f"buffer_load_dwordx4 {a(A_WD+4*tau,4)}, {v(V_F1OFF)}, {s(R_F1,4)}, {s(S_T1)} offen{NTW}"))
        A(f"s_add_u32 {s(S_T1)}, {s(S_T1)}, {8*3456}")
    A(f"s_mov_b32 {s(S_SOFF)}, 0")
    k_idx = []
    def k_load():
        i = len(k_idx)
        k_idx.append(A.vm(f"buffer_load_dwordx4 {v(V_BUF+4*i,4)}, {v(V_KOFF)}, {s(R_CUR,4)}, {s(S_SOFF)} offen{NTK}"))
        A(f"s_add_u32 {s(S_SOFF)}, {s(S_SOFF)}, 4096")
    XR = T + 60
    XV = T
    A(f"v_mul_u32_u24 {v(XR)}, 640, {v(V_SG)}")
    A(f"s_mul_i32 {s(S_T1)}, {s(S_B)}, 2560")
    A(f"s_mul_i32 {s(S_T3)}, {s(S_W)}, 160")
    A(f"s_add_u32 {s(S_T1)}, {s(S_T1)}, {s(S_T3)}")
    A(f"v_add_u32 {v(XR)}, {s(S_T1)}, {v(XR)}")
    for j in range(10):
        A(f"ds_read_b128 {v(XV+4*j,4)}, {v(XR)} offset:{L_XN + 16*j}")
    for _ in range(4): k_load()
    A("s_waitcnt lgkmcnt(0)")
    def mkA(dst, src, masks=V_M):
        for k in range(4): A(f"v_and_b32 {v(dst+k)}, {v(src)}, {v(masks+k)}")
    mkA(V_A0, XV)
    for t in range(40):
        cur, nxt = (V_A0, V_A1) if t % 2 == 0 else (V_A1, V_A0)
        if t + 1 < 40: mkA(nxt, XV + t + 1)
        else: A.nop(2)
        if t % 4 == 0: A.wait_vm(wq_idx[min(t+3, 39)])
        c = "0" if t == 0 else a(A_Q, 4)
        A(f"v_mfma_f32_16x16x32_bf16 {a(A_Q,4)}, {v(cur,4)}, {a(A_W+4*t,4)}, {c}")
        if t % 4 == 3 and len(k_idx) < 14: k_load()
    stamp()
    FR = T + 61
    A(f"v_bfe_u32 {v(T+62)}, {v(V_LANE)}, 3, 1")
    A(f"v_lshl_add_u32 {v(T+62)}, {v(V_SG)}, 1, {v(T+62)}")
    A(f"v_and_b32 {v(T+62)}, 3, {v(T+62)}")
    A(f"v_mul_u32_u24 {v(FR)}, 160, {v(T+62)}")
    A(f"v_lshrrev_b32 {v(T+62)}, 1, {v(V_SG)}")
    A(f"v_add_u32 {v(FR)}, {v(FR)}, {v(T+62)}")
    A(f"s_lshr_b32 {s(S_T1)}, {s(S_C1)}, 2")
    A(f"v_add_lshl_u32 {v(FR)}, {v(FR)}, {s(S_T1)}, 2")
    FX = T
    for tau in range(5):
        for b in range(4):
            A(f"ds_read_b32 {v(FX+4*tau+b)}, {v(FR)} offset:{L_XN + b*2560 + tau*8}")
    QA = T + 63
    A(f"v_and_b32 {v(QA)}, 1, {v(V_SG)}")
    A(f"v_lshlrev_b32 {v(QA)}, 2, {v(QA)}")
    A(f"v_lshl_add_u32 {v(QA)}, {v(V_C)}, 3, {v(QA)}")
    A(f"s_lshl_b32 {s(S_T1)}, {s(S_W)}, 7")
    A(f"v_add_lshl_u32 {v(QA)}, {v(QA)}, {s(S_T1)}, 2")
    A.nop(4)
    A(f"ds_write_b128 {v(QA)}, {a(A_Q,4)} offset:{L_QP}")
    A.wait_vm(f1_idx[-1], " lgkmcnt(0)")
    seq = [(tau, b) for tau in range(5) for b in range(4)]
    mkA(V_A0, FX)
    for n, (tau, b) in enumerate(seq):
        cur, nxt = (V_A0, V_A1) if n % 2 == 0 else (V_A1, V_A0)
        if n + 1 < len(seq): mkA(nxt, FX + n + 1)
        else: A.nop(2)
        c = "0" if tau == 0 else a(A_F+4*b, 4)
        A(f"v_mfma_f32_16x16x32_bf16 {a(A_F+4*b,4)}, {v(cur,4)}, {a(A_WD+4*tau,4)}, {c}")
    FA = T + 62
    A(f"v_bfe_u32 {v(FA)}, {v(V_LANE)}, 3, 1")
    A(f"v_lshlrev_b32 {v(FA)}, 6, {v(FA)}")
    A(f"v_and_b32 {v(T+61)}, 7, {v(V_LANE)}")
    A(f"v_lshl_add_u32 {v(FA)}, {v(T+61)}, 3, {v(FA)}")
    A(f"v_and_b32 {v(T+61)}, 1, {v(V_SG)}")
    A(f"v_lshl_add_u32 {v(FA)}, {v(T+61)}, 2, {v(FA)}")
    A(f"s_lshl_b32 {s(S_T1)}, {s(S_W)}, 9")
    A(f"v_add_lshl_u32 {v(FA)}, {v(FA)}, {s(S_T1)}, 2")
    A.nop(4)
    A(f"s_mov_b64 exec, {s(S_FVAL,2)}")
    for b in range(4):
        A(f"ds_write_b128 {v(FA)}, {a(A_F+4*b,4)} offset:{L_FP + b*512}")
    A("s_mov_b64 exec, -1")
    while len(k_idx) < 16: k_load()
    A("s_waitcnt lgkmcnt(0)")
    A("s_barrier")
    QR = T + 60
    A(f"v_lshlrev_b32 {v(QR)}, 5, {v(V_C)}")
    for w in range(4):
        A(f"ds_read_b128 {v(T+8*w,4)}, {v(QR)} offset:{L_QP + w*512}")
        A(f"ds_read_b128 {v(T+8*w+4,4)}, {v(QR)} offset:{L_QP + w*512 + 16}")
    FRD = T + 61
    A(f"v_lshlrev_b32 {v(FRD)}, 2, {v(V_LANE)}")
    A(f"s_lshl_b32 {s(S_T1)}, {s(S_W)}, 9")
    A(f"v_add_u32 {v(FRD)}, {s(S_T1)}, {v(FRD)}")
    for w in range(4):
        for rp in range(2):
            A(f"ds_read_b32 {v(T+32+2*w+rp)}, {v(FRD)} offset:{L_FP + w*2048 + rp*256}")
    for _ in range(4): k_load()
    A("s_waitcnt lgkmcnt(0)")
    for e in range(8):
        A(f"v_add_f32 {v(T+e)}, {v(T+e)}, {v(T+8+e)}")
        A(f"v_add_f32 {v(T+16+e)}, {v(T+16+e)}, {v(T+24+e)}")
    for e in range(8): A(f"v_add_f32 {v(T+e)}, {v(T+e)}, {v(T+16+e)}")
    for k in range(4): A(f"v_cvt_pk_bf16_f32 {v(V_Q+k)}, {v(T+2*k)}, {v(T+2*k+1)}")
    A(f"v_add_f32 {v(V_FV)}, {v(T+32)}, {v(T+33)}")
    for k in range(2, 8): A(f"v_add_f32 {v(V_FV)}, {v(V_FV)}, {v(T+32+k)}")
    def poll_cleared():
        A(f"v_and_b32 {v(T+40)}, 3, {v(V_LANE)}")
        A(f"v_lshlrev_b32 {v(T+40)}, 6, {v(T+40)}")
        A.vm(f"buffer_load_dword {v(V_POLL)}, {v(T+40)}, {s(R_DBG,4)}, 0 offen sc1")
    poll_cleared()
    while len(k_idx) < 32: k_load()
    if o["dump"] == "q":
        dump(A, [V_Q, V_Q+1, V_Q+2, V_Q+3, V_FV]);
    def wo_loads(tau0):
        for tau in (tau0, tau0+1):
            for u in range(5):
                A.vm(f"buffer_load_dwordx4 {a(A_W+4*(tau*5+u),4)}, {v(V_WOOFF)}, {s(R_WO,4)}, {s(S_WOOFF)} offen offset:{256*u}{NTW}")
            A(f"s_add_u32 {s(S_WOOFF)}, {s(S_WOOFF)}, {4*1280}")
    A(f"s_lshl_b32 {s(S_T1)}, {s(S_H)}, 7")
    A(f"s_lshl_b32 {s(S_T3)}, {s(S_W)}, 5")
    A(f"s_add_u32 {s(S_T1)}, {s(S_T1)}, {s(S_T3)}")
    A(f"s_mul_i32 {s(S_WOOFF)}, {s(S_T1)}, 1280")
    def call(lbl):
        A(f"s_call_b64 {s(S_RET,2)}, {lbl}")
    def savesc(k):
        A(f"v_mov_b32 {v(V_SC+2*k)}, {v(V_PC0)}\nv_mov_b32 {v(V_SC+2*k+1)}, {v(V_PC1)}")
    spin_id = [0]
    def spin_check(check, reload_):
        i = spin_id[0]; spin_id[0] += 1
        A(f"s_mov_b32 {s(S_SPIN)}, 0")
        A.label(f"L_sp{i}")
        check()
        A(f"s_cbranch_vccz L_spd{i}")
        A(f"s_add_u32 {s(S_SPIN)}, {s(S_SPIN)}, 1")
        A(f"s_cmp_ge_u32 {s(S_SPIN)}, {SPIN_MAX}")
        A(f"s_cbranch_scc1 L_spd{i}")
        A("s_sleep 2")
        f = A.fifo
        reload_()
        A.fifo = f
        A("s_waitcnt vmcnt(0)")
        A(f"s_branch L_sp{i}")
        A.label(f"L_spd{i}")
    stamp()
    call("L_kbody"); savesc(0)
    stamp()
    def chk_cleared():
        A(f"v_cmp_ne_u32 vcc, 64, {v(V_POLL)}")
        A.nop(5)
    spin_check(chk_cleared, poll_cleared)
    A(f"s_cmp_lt_u32 {s(S_ID)}, 216")
    A("s_cbranch_scc0 L_nofpub")
    A(f"s_and_b32 {s(S_T1)}, {s(S_ID)}, 3")
    A(f"s_lshl_b32 {s(S_T1)}, {s(S_T1)}, 1")
    A(f"s_bfe_u32 {s(S_T3)}, {s(S_ID)}, 0x10002")
    A(f"s_add_u32 {s(S_T1)}, {s(S_T1)}, {s(S_T3)}")
    A(f"s_mul_i32 {s(S_T1)}, {s(S_T1)}, 27648")
    A(f"s_mul_i32 {s(S_T3)}, {s(S_W)}, 6912")
    A(f"s_add_u32 {s(S_T1)}, {s(S_T1)}, {s(S_T3)}")
    A(f"s_lshl_b32 {s(S_T3)}, {s(S_C2)}, 8")
    A(f"s_add_u32 {s(S_T1)}, {s(S_T1)}, {s(S_T3)}")
    A(f"s_add_u32 {s(S_T1)}, {s(S_T1)}, {F_OFF}")
    A(f"v_lshlrev_b32 {v(T)}, 2, {v(V_LANE)}")
    A(f"buffer_store_dword {v(V_FV)}, {v(T)}, {s(R_WS,4)}, {s(S_T1)} offen sc0 sc1")
    A.label("L_nofpub")
    wo_loads(0)
    call("L_kbody"); savesc(1); wo_loads(2)
    call("L_kbody"); savesc(2); wo_loads(4)
    for i in range(4): A(f"s_mov_b32 {s(R_CUR+i)}, {s(R_V+i)}")
    A(f"s_mov_b32 {s(S_SOFF)}, 0")
    call("L_kbody"); savesc(3); wo_loads(6)
    stamp()
    if o["dump"] == "sraw": dump(A, [V_SC+i for i in range(8)])
    def rnd8():
        if o["noround"]: return
        for k in range(4):
            x0, x1 = V_SC+2*k, V_SC+2*k+1
            A(f"v_cvt_pk_bf16_f32 {v(T+k)}, {v(x0)}, {v(x1)}")
        for k in range(4):
            x0, x1 = V_SC+2*k, V_SC+2*k+1
            A(f"v_lshlrev_b32 {v(x0)}, 16, {v(T+k)}")
            A(f"v_and_b32 {v(x1)}, 0xffff0000, {v(T+k)}")
    rnd8()
    for k in range(8): A(f"v_mul_f32 {v(V_SC+k)}, {F32_SCALE:#x}, {v(V_SC+k)}")
    rnd8()
    A(f"v_max3_f32 {v(V_MW)}, {v(V_SC)}, {v(V_SC+1)}, {v(V_SC+2)}")
    A(f"v_max3_f32 {v(V_MW)}, {v(V_MW)}, {v(V_SC+3)}, {v(V_SC+4)}")
    A(f"v_max3_f32 {v(V_MW)}, {v(V_MW)}, {v(V_SC+5)}, {v(V_SC+6)}")
    A(f"v_max_f32 {v(V_MW)}, {v(V_MW)}, {v(V_SC+7)}")
    allreduce(A, "v_max_f32", V_MW, T+8)
    for k in range(8): A(f"v_sub_f32 {v(V_SC+k)}, {v(V_SC+k)}, {v(V_MW)}")
    for k in range(8): A(f"v_mul_f32 {v(V_SC+k)}, {F32_LOG2E:#x}, {v(V_SC+k)}")
    for k in range(8): A(f"v_exp_f32 {v(V_SC+k)}, {v(V_SC+k)}")
    A.nop(1)
    A(f"v_add_f32 {v(V_LW)}, {v(V_SC)}, {v(V_SC+1)}")
    for k in range(2, 8): A(f"v_add_f32 {v(V_LW)}, {v(V_LW)}, {v(V_SC+k)}")
    for k in range(8): A(f"v_cvt_pk_bf16_f32 {v(V_SC+k)}, {v(V_SC+k)}, {v(V_SC+k)}")
    allreduce(A, "v_add_f32", V_LW, T+8)
    A(f"s_lshl_b32 {s(S_T1)}, {s(S_BH)}, 6")
    A(f"s_lshl_b32 {s(S_T3)}, {s(S_HALF)}, 2")
    A(f"s_add_u32 {s(S_T3)}, {s(S_T3)}, {s(S_W)}")
    A(f"s_lshl_b32 {s(S_T3)}, {s(S_T3)}, 3")
    A(f"s_add_u32 {s(S_T1)}, {s(S_T1)}, {s(S_T3)}")
    A(f"s_add_u32 {s(S_T1)}, {s(S_T1)}, {ST_OFF}")
    A(f"v_mov_b32 {v(T)}, {v(V_MW)}\nv_mov_b32 {v(T+1)}, {v(V_LW)}\nv_mov_b32 {v(T+2)}, 0")
    A("s_mov_b64 exec, 1")
    A(f"buffer_store_dwordx2 {v(T,2)}, {v(T+2)}, {s(R_WS,4)}, {s(S_T1)} offen sc0 sc1")
    A("s_mov_b64 exec, -1")
    def setpc_(k):
        A(f"v_mov_b32 {v(V_PC0)}, {v(V_SC+2*k)}\nv_mov_b32 {v(V_PC1)}, {v(V_SC+2*k+1)}")
    for i in range(4): A(f"v_mov_b32 {v(V_O+i)}, 0")
    setpc_(0)
    call("L_vbody"); setpc_(1)
    A(f"s_lshl_b32 {s(S_T1)}, {s(S_H)}, 1")
    A(f"s_add_u32 {s(S_T1)}, {s(S_T1)}, {s(S_HALF)}")
    A(f"s_mul_i32 {s(S_T4)}, {s(S_T1)}, 27")
    A(f"s_lshl_b32 {s(S_T3)}, {s(S_W)}, 2")
    A(f"s_add_u32 {s(S_T1)}, {s(S_T4)}, {s(S_T3)}")
    A(f"s_mul_i32 {s(S_T2)}, {s(S_T1)}, 1280")
    for cp in range(2):
        for u in range(5):
            A(f"buffer_load_dwordx4 {a(A_WD+4*(cp*5+u),4)}, {v(V_WOOFF)}, {s(R_WD,4)}, {s(S_T2)} offen offset:{256*u}{NTW}")
        if cp == 0: A(f"s_add_u32 {s(S_T2)}, {s(S_T2)}, {16*1280}")
    GV = T + 60
    G = T + 40
    A(f"v_lshl_add_u32 {v(GV)}, {v(V_C)}, 4, {v(V_SG)}")
    A(f"v_add_u32 {v(GV)}, {s(S_T3)}, {v(GV)}")
    A(f"v_cmp_gt_u32 vcc, 27, {v(GV)}")
    A(f"v_add_u32 {v(GV)}, {s(S_T4)}, {v(GV)}")
    A(f"v_lshlrev_b32 {v(GV)}, 2, {v(GV)}")
    A(f"s_mul_i32 {s(S_T1)}, {s(S_B)}, 6912")
    A(f"v_add_u32 {v(GV)}, {s(S_T1)}, {v(GV)}")
    A(f"v_mov_b32 {v(T)}, 0x7ffffff0")
    A(f"v_cndmask_b32 {v(GV)}, {v(T)}, {v(GV)}, vcc")
    SV = T + 61
    A(f"v_and_b32 {v(SV)}, 7, {v(V_LANE)}")
    A(f"v_lshlrev_b32 {v(SV)}, 3, {v(SV)}")
    def gather():
        for k in range(8):
            A(f"s_mov_b32 {s(S_T1)}, {F_OFF + k*27648}")
            A(f"buffer_load_dword {v(G+k)}, {v(GV)}, {s(R_WS,4)}, {s(S_T1)} offen sc1")
    def gather_st():
        A(f"s_lshl_b32 {s(S_T1)}, {s(S_BH)}, 6")
        A(f"s_add_u32 {s(S_T1)}, {s(S_T1)}, {ST_OFF}")
        A(f"buffer_load_dwordx2 {v(G+8,2)}, {v(SV)}, {s(R_WS,4)}, {s(S_T1)} offen sc1")
    gather(); gather_st()
    A(f"s_mul_i32 {s(S_T1)}, {s(S_ID)}, 205")
    A(f"s_lshr_b32 {s(S_C1)}, {s(S_T1)}, 12")
    A(f"s_mul_i32 {s(S_T1)}, {s(S_C1)}, 20")
    A(f"s_sub_u32 {s(S_C2)}, {s(S_ID)}, {s(S_T1)}")
    XO = T + 62
    A(f"v_and_b32 {v(T)}, 1, {v(V_SG)}")
    A(f"v_lshlrev_b32 {v(T)}, 1, {v(T)}")
    A(f"v_lshrrev_b32 {v(T+1)}, 1, {v(V_SG)}")
    A(f"v_add_u32 {v(T)}, {v(T)}, {v(T+1)}")
    A(f"v_and_b32 {v(T+1)}, 7, {v(V_LANE)}")
    A(f"v_lshl_add_u32 {v(T)}, {v(T+1)}, 2, {v(T)}")
    A(f"s_lshl_b32 {s(S_T1)}, {s(S_C2)}, 5")
    A(f"s_mul_i32 {s(S_T3)}, {s(S_C1)}, 640")
    A(f"s_add_u32 {s(S_T1)}, {s(S_T1)}, {s(S_T3)}")
    A(f"v_add_lshl_u32 {v(V_F1OFF)}, {v(T)}, {s(S_T1)}, 1")
    A(f"buffer_load_ushort {v(V_CX)}, {v(V_F1OFF)}, {s(R_X,4)}, 0 offen")
    call("L_vbody"); setpc_(2)
    stamp()
    def chk_g():
        A(f"v_max_u32 {v(T)}, {v(G)}, {v(G+1)}")
        A(f"v_max3_u32 {v(T)}, {v(T)}, {v(G+2)}, {v(G+3)}")
        A(f"v_max3_u32 {v(T)}, {v(T)}, {v(G+4)}, {v(G+5)}")
        A(f"v_max3_u32 {v(T)}, {v(T)}, {v(G+6)}, {v(G+7)}")
        A(f"v_max3_u32 {v(T)}, {v(T)}, {v(G+8)}, {v(G+9)}")
        A(f"v_cmp_eq_u32 vcc, -1, {v(T)}")
        A.nop(5)
    def reload_g():
        gather(); gather_st()
    spin_check(chk_g, reload_g)
    g_, u_, z_, t_ = T, T+1, T+2, T+3
    A(f"v_add_f32 {v(g_)}, {v(G)}, {v(G+2)}\nv_add_f32 {v(g_)}, {v(g_)}, {v(G+4)}\nv_add_f32 {v(g_)}, {v(g_)}, {v(G+6)}")
    A(f"v_add_f32 {v(u_)}, {v(G+1)}, {v(G+3)}\nv_add_f32 {v(u_)}, {v(u_)}, {v(G+5)}\nv_add_f32 {v(u_)}, {v(u_)}, {v(G+7)}")
    rbf(A, g_, t_); rbf(A, u_, t_)
    A(f"v_mul_f32 {v(z_)}, {v(g_)}, {v(g_)}")
    A(f"v_mul_f32 {v(z_)}, 0x3d372713, {v(z_)}")
    A(f"v_add_f32 {v(z_)}, 1.0, {v(z_)}")
    A(f"v_mul_f32 {v(z_)}, {v(z_)}, {v(g_)}")
    A(f"v_mul_f32 {v(z_)}, 0xc0135761, {v(z_)}")
    A(f"v_exp_f32 {v(z_)}, {v(z_)}")
    A.nop(1)
    A(f"v_add_f32 {v(z_)}, 1.0, {v(z_)}")
    A(f"v_rcp_f32 {v(z_)}, {v(z_)}")
    A.nop(1)
    A(f"v_mul_f32 {v(z_)}, {v(z_)}, {v(g_)}")
    rbf(A, z_, t_)
    A(f"v_mul_f32 {v(z_)}, {v(z_)}, {v(u_)}")
    A(f"v_cvt_pk_bf16_f32 {v(z_)}, {v(z_)}, {v(z_)}")
    A.nop(2)
    for cp in range(2):
        dst = V_A0 if cp == 0 else V_A1
        for k in range(4):
            A(f"v_and_b32_dpp {v(dst+k)}, {v(z_)}, {v(V_ML+k)} row_newbcast:{cp} row_mask:0xf bank_mask:0xf")
    A.nop(2)
    for cp in range(2):
        dst = V_A0 if cp == 0 else V_A1
        for u in range(5):
            c = "0" if cp == 0 else a(A_Y+4*u, 4)
            A(f"v_mfma_f32_16x16x32_bf16 {a(A_Y+4*u,4)}, {v(dst,4)}, {a(A_WD+4*(cp*5+u),4)}, {c}")
    m_, l_, mg = G+8, G+9, T+4
    A(f"v_mov_b32 {v(mg)}, {v(m_)}")
    A.nop(2)
    A(f"v_max_f32_dpp {v(mg)}, {v(mg)}, {v(mg)} quad_perm:[1,0,3,2] row_mask:0xf bank_mask:0xf")
    A.nop(2)
    A(f"v_max_f32_dpp {v(mg)}, {v(mg)}, {v(mg)} quad_perm:[2,3,0,1] row_mask:0xf bank_mask:0xf")
    A.nop(2)
    A(f"v_max_f32_dpp {v(mg)}, {v(mg)}, {v(mg)} row_half_mirror row_mask:0xf bank_mask:0xf")
    A(f"v_sub_f32 {v(m_)}, {v(m_)}, {v(mg)}")
    A(f"v_mul_f32 {v(m_)}, {F32_LOG2E:#x}, {v(m_)}")
    A(f"v_exp_f32 {v(m_)}, {v(m_)}")
    A.nop(1)
    A(f"v_mul_f32 {v(l_)}, {v(l_)}, {v(m_)}")
    A.nop(2)
    A(f"v_add_f32_dpp {v(l_)}, {v(l_)}, {v(l_)} quad_perm:[1,0,3,2] row_mask:0xf bank_mask:0xf")
    A.nop(2)
    A(f"v_add_f32_dpp {v(l_)}, {v(l_)}, {v(l_)} quad_perm:[2,3,0,1] row_mask:0xf bank_mask:0xf")
    A.nop(2)
    A(f"v_add_f32_dpp {v(l_)}, {v(l_)}, {v(l_)} row_half_mirror row_mask:0xf bank_mask:0xf")
    A(f"v_sub_f32 {v(V_FAC)}, {v(V_MW)}, {v(mg)}")
    A(f"v_mul_f32 {v(V_FAC)}, {F32_LOG2E:#x}, {v(V_FAC)}")
    A(f"v_exp_f32 {v(V_FAC)}, {v(V_FAC)}")
    A(f"v_rcp_f32 {v(l_)}, {v(l_)}")
    A.nop(1)
    A(f"v_mul_f32 {v(V_FAC)}, {v(V_FAC)}, {v(l_)}")
    A(f"v_lshlrev_b32 {v(V_CX)}, 16, {v(V_CX)}")
    call("L_vbody"); setpc_(3)
    call("L_vbody")
    stamp()
    A.nop(8)
    for i in range(4): A(f"v_mul_f32 {v(V_O+i)}, {v(V_O+i)}, {v(V_FAC)}")
    if o["dump"] == "o": dump(A, [V_O, V_O+1, V_O+2, V_O+3, V_FAC, V_MW, V_LW])
    OA = T
    A(f"v_and_b32 {v(OA)}, 1, {v(V_SG)}")
    A(f"v_lshlrev_b32 {v(OA)}, 2, {v(OA)}")
    A(f"v_lshl_add_u32 {v(OA)}, {v(V_C)}, 3, {v(OA)}")
    A(f"s_lshl_b32 {s(S_T1)}, {s(S_W)}, 7")
    A(f"v_add_lshl_u32 {v(OA)}, {v(OA)}, {s(S_T1)}, 2")
    A("s_mov_b32 exec_hi, 0")
    A(f"ds_write_b128 {v(OA)}, {v(V_O,4)} offset:{L_OP}")
    A("s_mov_b32 exec_hi, -1")
    A(f"v_and_b32 {v(T+1)}, 7, {v(V_C)}")
    A(f"v_lshl_add_u32 {v(T+1)}, {v(T+1)}, 2, {v(V_SG)}")
    A(f"s_lshl_b32 {s(S_T1)}, {s(S_W)}, 5")
    A(f"v_add_lshl_u32 {v(T+1)}, {v(T+1)}, {s(S_T1)}, 2")
    A("s_waitcnt lgkmcnt(0)")
    A("s_barrier")
    stamp()
    for w in range(4): A(f"ds_read_b32 {v(T+4+w)}, {v(T+1)} offset:{L_OP + w*512}")
    A("s_waitcnt lgkmcnt(0)")
    A(f"v_add_f32 {v(T+4)}, {v(T+4)}, {v(T+5)}\nv_add_f32 {v(T+6)}, {v(T+6)}, {v(T+7)}\nv_add_f32 {v(T+4)}, {v(T+4)}, {v(T+6)}")
    PH, PL = T+8, T+9
    A(f"v_cvt_pk_bf16_f32 {v(PH)}, {v(T+4)}, {v(T+4)}")
    A(f"v_and_b32 {v(T+5)}, 0xffff0000, {v(PH)}")
    A(f"v_sub_f32 {v(T+5)}, {v(T+4)}, {v(T+5)}")
    A(f"v_cvt_pk_bf16_f32 {v(PL)}, {v(T+5)}, {v(T+5)}")
    A.nop(2)
    def mkY(dst, tau):
        for k in range(4):
            A(f"v_and_b32_dpp {v(dst+k)}, {v(PH)}, {v(V_M+k)} row_newbcast:{tau} row_mask:0xf bank_mask:0x3")
            A(f"v_and_b32_dpp {v(dst+k)}, {v(PL)}, {v(V_M+k)} row_newbcast:{tau} row_mask:0xf bank_mask:0xc")
    mkY(V_A0, 0)
    for tau in range(8):
        cur, nxt = (V_A0, V_A1) if tau % 2 == 0 else (V_A1, V_A0)
        if tau + 1 < 8: mkY(nxt, tau + 1)
        else: A.nop(2)
        for u in range(5):
            A(f"v_mfma_f32_16x16x32_bf16 {a(A_Y+4*u,4)}, {v(cur,4)}, {a(A_W+4*(tau*5+u),4)}, {a(A_Y+4*u,4)}")
    YA = T + 10
    A(f"v_lshrrev_b32 {v(YA)}, 1, {v(V_SG)}")
    A(f"s_lshl_b32 {s(S_T1)}, {s(S_W)}, 1")
    A(f"v_add_u32 {v(YA)}, {s(S_T1)}, {v(YA)}")
    A(f"v_mul_u32_u24 {v(YA)}, 640, {v(YA)}")
    A(f"v_lshl_add_u32 {v(YA)}, {v(V_C)}, 3, {v(YA)}")
    A(f"v_and_b32 {v(T+11)}, 1, {v(V_SG)}")
    A(f"v_lshl_add_u32 {v(YA)}, {v(T+11)}, 2, {v(YA)}")
    A(f"v_lshlrev_b32 {v(YA)}, 2, {v(YA)}")
    A.nop(2)
    for u in range(5):
        A(f"ds_write_b128 {v(YA)}, {a(A_Y+4*u,4)} offset:{L_YP + 512*u}")
    A("s_waitcnt lgkmcnt(0)")
    A("s_barrier")
    stamp()
    A(f"s_cmp_eq_u32 {s(S_W)}, 3")
    A("s_cbranch_scc1 L_cons")
    A(f"v_cmp_gt_u32 vcc, 160, v0")
    A(f"s_and_saveexec_b64 {s(S_EX,2)}, vcc")
    A("s_cbranch_execz L_end")
    A(f"v_lshlrev_b32 {v(T)}, 4, v0")
    for k in range(8): A(f"ds_read_b128 {v(T+4+4*k,4)}, {v(T)} offset:{L_YP + 2560*k}")
    A(f"v_lshrrev_b32 {v(T+1)}, 3, v0")
    A(f"v_lshlrev_b32 {v(T+1)}, 13, {v(T+1)}")
    A(f"v_and_b32 {v(T+2)}, 7, v0")
    A(f"v_lshl_add_u32 {v(T+1)}, {v(T+2)}, 4, {v(T+1)}")
    A(f"s_mul_i32 {s(S_T1)}, {s(S_B)}, {20*8192}")
    A(f"s_and_b32 {s(S_T3)}, {s(S_ID)}, 63")
    A(f"s_lshl_b32 {s(S_T3)}, {s(S_T3)}, 7")
    A(f"s_add_u32 {s(S_T1)}, {s(S_T1)}, {s(S_T3)}")
    A("s_waitcnt lgkmcnt(0)")
    for e in range(4):
        A(f"v_add_f32 {v(T+4+e)}, {v(T+4+e)}, {v(T+8+e)}")
        A(f"v_add_f32 {v(T+12+e)}, {v(T+12+e)}, {v(T+16+e)}")
        A(f"v_add_f32 {v(T+20+e)}, {v(T+20+e)}, {v(T+24+e)}")
        A(f"v_add_f32 {v(T+28+e)}, {v(T+28+e)}, {v(T+32+e)}")
    for e in range(4):
        A(f"v_add_f32 {v(T+4+e)}, {v(T+4+e)}, {v(T+12+e)}")
        A(f"v_add_f32 {v(T+20+e)}, {v(T+20+e)}, {v(T+28+e)}")
    for e in range(4):
        A(f"v_add_f32 {v(T+4+e)}, {v(T+4+e)}, {v(T+20+e)}")
    A(f"buffer_store_dwordx4 {v(T+4,4)}, {v(T+1)}, {s(R_WS,4)}, {s(S_T1)} offen sc0 sc1")
    if o["stamp"]:
        A("s_waitcnt vmcnt(0)")
        A("s_mov_b64 exec, -1")
        k0 = nst[0]; stamp_out(); nst[0] = k0
    A("s_endpgm")
    A.label("L_cons")
    A(f"s_cmp_lt_u32 {s(S_ID)}, 80")
    A("s_cbranch_scc0 L_end")
    A(f"v_lshlrev_b32 {v(T)}, 4, {v(V_LANE)}")
    A(f"s_lshl_b32 {s(S_T2)}, {s(S_ID)}, 13")
    Yv = T + 4
    def yload():
        A(f"s_mov_b32 {s(S_T1)}, {s(S_T2)}")
        for j in range(8):
            off = (j % 4) * 1024
            A(f"buffer_load_dwordx4 {v(Yv+4*j,4)}, {v(T)}, {s(R_WS,4)}, {s(S_T1)} offen offset:{off} sc1")
            if j == 3: A(f"s_add_u32 {s(S_T1)}, {s(S_T1)}, 4096")
    yload()
    A("s_waitcnt vmcnt(0)")
    def chk_y():
        A(f"v_max3_u32 {v(T+1)}, {v(Yv)}, {v(Yv+1)}, {v(Yv+2)}")
        for k in range(3, 31, 2):
            A(f"v_max3_u32 {v(T+1)}, {v(T+1)}, {v(Yv+k)}, {v(Yv+k+1)}")
        A(f"v_max_u32 {v(T+1)}, {v(T+1)}, {v(Yv+31)}")
        A(f"v_cmp_eq_u32 vcc, -1, {v(T+1)}")
        A.nop(5)
    spin_check(chk_y, yload)
    for step in (16, 8, 4):
        for k in range(step):
            A(f"v_add_f32 {v(Yv+k)}, {v(Yv+k)}, {v(Yv+k+step)}")
    a0, a1, a2, a3 = Yv, Yv+1, Yv+2, Yv+3
    A.nop(2)
    A(f"v_permlane32_swap_b32 {v(a0)}, {v(a1)}")
    A(f"v_permlane32_swap_b32 {v(a2)}, {v(a3)}")
    A.nop(2)
    A(f"v_add_f32 {v(a0)}, {v(a0)}, {v(a1)}")
    A(f"v_add_f32 {v(a2)}, {v(a2)}, {v(a3)}")
    A.nop(2)
    A(f"v_permlane16_swap_b32 {v(a0)}, {v(a2)}")
    A.nop(2)
    A(f"v_add_f32 {v(a0)}, {v(a0)}, {v(a2)}")
    A.nop(2)
    A(f"v_add_f32_dpp {v(a0)}, {v(a0)}, {v(a0)} row_ror:8 row_mask:0xf bank_mask:0xf")
    A(f"v_add_f32 {v(a0)}, {v(a0)}, {v(V_CX)}")
    A(f"v_cvt_pk_bf16_f32 {v(a0)}, {v(a0)}, {v(a0)}")
    A("s_mov_b32 exec_lo, 0x00ff00ff\ns_mov_b32 exec_hi, 0x00ff00ff")
    A(f"buffer_store_short {v(a0)}, {v(V_F1OFF)}, {s(R_OUT,4)}, 0 offen")
    if o["stamp"]:
        A("s_waitcnt vmcnt(0)")
        A("s_mov_b64 exec, -1")
        stamp_out()
    A.label("L_end")
    A("s_endpgm")
    A.label("L_kbody")
    for i in range(32):
        n = i % 16
        b = V_BUF + 4*i
        A("s_waitcnt vmcnt(31)")
        A(f"v_dot2_f32_bf16 {v(V_ACC+n)}, {v(b)}, {v(V_Q)}, 0")
        for k in range(1, 4):
            A(f"v_dot2_f32_bf16 {v(V_ACC+n)}, {v(b+k)}, {v(V_Q+k)}, {v(V_ACC+n)}")
        A(f"buffer_load_dwordx4 {v(b,4)}, {v(V_KOFF)}, {s(R_CUR,4)}, {s(S_SOFF)} offen{NTK}")
        A(f"s_add_u32 {s(S_SOFF)}, {s(S_SOFF)}, 4096")
        if n == 15:
            x = V_ACC
            A.nop(2)
            for t in range(8):
                A(f"v_add_f32_dpp {v(x+t)}, {v(x+t)}, {v(x+t)} row_ror:8 row_mask:0xf bank_mask:0x3")
                A(f"v_add_f32_dpp {v(x+t)}, {v(x+t+8)}, {v(x+t+8)} row_ror:8 row_mask:0xf bank_mask:0xc")
            for t in range(4):
                A(f"v_add_f32_dpp {v(x+t)}, {v(x+t)}, {v(x+t)} row_half_mirror row_mask:0xf bank_mask:0x5")
                A(f"v_add_f32_dpp {v(x+t)}, {v(x+t+4)}, {v(x+t+4)} row_half_mirror row_mask:0xf bank_mask:0xa")
            A.nop(2)
            for t in range(4):
                A(f"v_add_f32_dpp {v(x+t)}, {v(x+t)}, {v(x+t)} quad_perm:[2,3,0,1] row_mask:0xf bank_mask:0xf")
            A(f"v_cndmask_b32 {v(x)}, {v(x)}, {v(x+2)}, {s(S_M2,2)}")
            A(f"v_cndmask_b32 {v(x+1)}, {v(x+1)}, {v(x+3)}, {s(S_M2,2)}")
            A.nop(2)
            A(f"v_add_f32_dpp {v(x)}, {v(x)}, {v(x)} quad_perm:[1,0,3,2] row_mask:0xf bank_mask:0xf")
            A(f"v_add_f32_dpp {v(x+1)}, {v(x+1)}, {v(x+1)} quad_perm:[1,0,3,2] row_mask:0xf bank_mask:0xf")
            dst = V_PC0 if i == 15 else V_PC1
            A(f"v_cndmask_b32 {v(dst)}, {v(x)}, {v(x+1)}, {s(S_M1,2)}")
    A(f"s_setpc_b64 {s(S_RET,2)}")
    A.label("L_vbody")
    for i in range(32):
        n = i % 16
        b = V_BUF + 4*i
        P = V_PC0 if i < 16 else V_PC1
        for k in range(4):
            A(f"v_and_b32_dpp {v(V_A0+k)}, {v(P)}, {v(V_M+k)} row_newbcast:{n} row_mask:0xf bank_mask:0xf")
        A("s_waitcnt vmcnt(31)")
        A.nop(1)
        A(f"v_mfma_f32_16x16x32_bf16 {v(V_O,4)}, {v(V_A0,4)}, {v(b,4)}, {v(V_O,4)}")
        A(f"buffer_load_dwordx4 {v(b,4)}, {v(V_KOFF)}, {s(R_CUR,4)}, {s(S_SOFF)} offen{NTK}")
        A(f"s_add_u32 {s(S_SOFF)}, {s(S_SOFF)}, 4096")
    A(f"s_setpc_b64 {s(S_RET,2)}")
    A.L.append(f""".section .rodata,"a"
.p2align 6
.amdhsa_kernel {NAME}
  .amdhsa_next_free_vgpr 512
  .amdhsa_next_free_sgpr {NSGPR}
  .amdhsa_accum_offset 256
  .amdhsa_group_segment_fixed_size 0
  .amdhsa_kernarg_size 96
  .amdhsa_user_sgpr_count 2
  .amdhsa_user_sgpr_kernarg_segment_ptr 1
  .amdhsa_system_sgpr_workgroup_id_x 1
  .amdhsa_float_denorm_mode_32 3
  .amdhsa_float_denorm_mode_16_64 3
.end_amdhsa_kernel""")
    return A.text()

def dump(A, regs):
    A("s_waitcnt vmcnt(0) lgkmcnt(0)")
    A(f"s_mov_b32 s60, s{P_WS}\ns_mov_b32 s61, s{P_WS+1}\ns_mov_b32 s62, 0x10000000\ns_mov_b32 s63, 0x20000")
    A(f"s_lshl_b32 s{S_T1}, s{S_ID}, 10")
    A(f"s_add_u32 s{S_T1}, s{S_T1}, {DBG_OFF}")
    A(f"v_lshlrev_b32 v79, 2, v0")
    for k, r in enumerate(regs):
        A(f"buffer_store_dword v{r}, v79, s[60:63], s{S_T1} offen")
        A(f"s_add_u32 s{S_T1}, s{S_T1}, {65536*4}")
    A("s_waitcnt vmcnt(0)")
    A("s_endpgm")

if __name__ == "__main__":
    import json
    opts = json.loads(sys.argv[2]) if len(sys.argv) > 2 else {}
    open(sys.argv[1], "w").write(gen(opts))
```

```python
import sys

NAME = "parallel_sum__gqa_block_cached__geglu_ffn__decode_kernel"

class Asm:
    def __init__(self):
        self.L = []
        self.fifo = 0
    def __call__(self, s):
        for line in s.split("\n"):
            t = line.strip()
            if not t: continue
            self.L.append(t if t.endswith(":") else "  " + t)
    def label(self, s): self.L.append(s + ":")
    def nop(self, n):
        while n > 0:
            k = min(n, 16)
            self.L.append(f"  s_nop {k-1}")
            n -= k
    def vm(self, s):
        self(s)
        self.fifo += 1
        return self.fifo - 1
    def wait_vm(self, idx, extra=""):
        n = min(self.fifo - 1 - idx, 63)
        self(f"s_waitcnt vmcnt({n}){extra}")
    def text(self): return "\n".join(self.L) + "\n"

def v(i, n=1): return f"v{i}" if n == 1 else f"v[{i}:{i+n-1}]"
def a(i, n=1): return f"a{i}" if n == 1 else f"a[{i}:{i+n-1}]"
def s(i, n=1): return f"s{i}" if n == 1 else f"s[{i}:{i+n-1}]"

EP_OFF  = 0
QX_OFF  = 4096
QX_SIZE = 32*4*8*1024
F_OFF   = QX_OFF + QX_SIZE
F_ROW   = 864*16
F_SIZE  = 8*4*F_ROW
ST_OFF  = F_OFF + F_SIZE
ST_SIZE = 128*128
Y_OFF   = ST_OFF + ST_SIZE
Y_SIZE  = 256*5120
WS_SIZE = Y_OFF + Y_SIZE
DBG_OFF = 4 << 20
assert WS_SIZE <= DBG_OFF

L_XN = 0
L_QP = 10240
L_FP = 18432
L_QG = 26624
L_OP = 28672
L_YP = 30720
LDS_SIZE = 51200

P_X, P_K, P_V, P_WQ, P_WO, P_BX, P_WG, P_WU, P_WD, P_OUT, P_DBG, P_WS = [4+2*i for i in range(12)]
R_K, R_V, R_CUR, R_WQ, R_WO, R_F1, R_WD, R_WS, R_X, R_OUT = [28+4*i for i in range(10)]
S_TLO, S_THI = 68, 69
S_GVAL = 70
S_W, S_H, S_HALF, S_B, S_BH, S_SOFF, S_T0, S_T1, S_T2, S_T3 = range(72, 82)
S_RET = 82
S_M2 = 84
S_M1 = 86
S_FVAL = 88
S_SPIN = 90
S_ID = 91
S_WOOFF = 92
S_C1 = 93
S_C2 = 94
S_T4 = 95
S_EX = 96
S_J = 3
NSGPR = 100

V_TID, V_LANE, V_C, V_SG, V_KOFF, V_WQOFF, V_WOOFF, V_F1OFF, V_FV0, V_CX, V_FAC, V_MW, V_LW, V_FV1, V_PC0, V_PC1 = range(16)
V_T = 16
V_O = 80
V_A0 = 84
V_A1 = 88
V_ML = 92
V_M = 96
V_Q = 100
V_SC = 104
V_ACC = 112
V_BUF = 128
D = 32

A_W = 0
A_F1 = 20
A_WD = 160
A_Y = 200
A_F = 220
A_Q = 236

SPIN_MAX = 100000
F32_INV640 = 0x3acccccd
F32_EPS = 0x3727c5ac
F32_SCALE = 0x3db504f3
F32_LOG2E = 0x3fb8aa3b
TAG_HI_INC = 0x61c88647

def xrow(A, op, x, tmp):
    A(f"v_mov_b32 {v(tmp)}, {v(x)}")
    A.nop(2)
    A(f"v_permlane16_swap_b32 {v(x)}, {v(tmp)}")
    A.nop(2)
    A(f"{op} {v(x)}, {v(x)}, {v(tmp)}")
    A(f"v_mov_b32 {v(tmp)}, {v(x)}")
    A.nop(2)
    A(f"v_permlane32_swap_b32 {v(x)}, {v(tmp)}")
    A.nop(2)
    A(f"{op} {v(x)}, {v(x)}, {v(tmp)}")

def allreduce(A, op, x, tmp):
    for r in (8, 4, 2, 1):
        A.nop(2)
        A(f"{op}_dpp {v(x)}, {v(x)}, {v(x)} row_ror:{r} row_mask:0xf bank_mask:0xf")
    xrow(A, op, x, tmp)

def allreduce2(A, op, x, y, tx, ty):
    A.nop(1)
    for r in (8, 4, 2, 1):
        A(f"{op}_dpp {v(x)}, {v(x)}, {v(x)} row_ror:{r} row_mask:0xf bank_mask:0xf")
        A(f"{op}_dpp {v(y)}, {v(y)}, {v(y)} row_ror:{r} row_mask:0xf bank_mask:0xf")
        A.nop(1)
    A(f"v_mov_b32 {v(tx)}, {v(x)}")
    A(f"v_mov_b32 {v(ty)}, {v(y)}")
    A.nop(1)
    A(f"v_permlane16_swap_b32 {v(x)}, {v(tx)}")
    A(f"v_permlane16_swap_b32 {v(y)}, {v(ty)}")
    A.nop(1)
    A(f"{op} {v(x)}, {v(x)}, {v(tx)}")
    A(f"{op} {v(y)}, {v(y)}, {v(ty)}")
    A(f"v_mov_b32 {v(tx)}, {v(x)}")
    A(f"v_mov_b32 {v(ty)}, {v(y)}")
    A.nop(1)
    A(f"v_permlane32_swap_b32 {v(x)}, {v(tx)}")
    A(f"v_permlane32_swap_b32 {v(y)}, {v(ty)}")
    A.nop(1)
    A(f"{op} {v(x)}, {v(x)}, {v(tx)}")
    A(f"{op} {v(y)}, {v(y)}, {v(ty)}")

def rbf(A, x, tmp):
    A(f"v_cvt_pk_bf16_f32 {v(tmp)}, {v(x)}, {v(x)}")
    A(f"v_and_b32 {v(x)}, 0xffff0000, {v(tmp)}")

def gen(opts=None):
    o = dict(nt_kv=" nt", nt_w=" nt", dump=None, stamp=False, stf=" sc1", ldf=" sc1", ysleep=2, gpos=20,
             pretouch=True, warm_tail=False, nowo=False, wo_first=False)
    if opts: o.update(opts)
    NTK = o["nt_kv"]; NTW = o["nt_w"]; STF = o["stf"]; LDF = o["ldf"]
    A = Asm()
    T = V_T
    V_ST = T + 58
    nst = [0]
    def stamp(slot=None):
        if not o["stamp"]: return
        A("s_memrealtime s[98:99]")
        A("s_waitcnt lgkmcnt(0)")
        A(f"v_writelane_b32 {v(V_ST)}, s98, {nst[0] if slot is None else slot}")
        if slot is None: nst[0] += 1
    def stamp_out():
        if not o["stamp"]: return
        stamp(10)
        A(f"s_lshl_b32 {s(S_T1)}, {s(S_ID)}, 2")
        A(f"s_add_u32 {s(S_T1)}, {s(S_T1)}, {s(S_W)}")
        A(f"s_lshl_b32 {s(S_T1)}, {s(S_T1)}, 6")
        A(f"s_add_u32 {s(S_T1)}, {s(S_T1)}, {DBG_OFF}")
        A(f"s_mov_b32 s60, s{P_WS}\ns_mov_b32 s61, s{P_WS+1}\ns_mov_b32 s62, 0x10000000\ns_mov_b32 s63, 0x20000")
        A("s_mov_b64 exec, 0xffff")
        A(f"v_lshlrev_b32 {v(T+57)}, 2, {v(V_LANE)}")
        A(f"buffer_store_dword {v(V_ST)}, {v(T+57)}, s[60:63], {s(S_T1)} offen")
    A.L.append(f"; @launch grid=(256,1,1) block=(256,1,1) lds={LDS_SIZE}")
    A.L.append('.amdgcn_target "amdgcn-amd-amdhsa--gfx950"')
    A.L.append(".text")
    A.L.append(f".globl {NAME}")
    A.L.append(".p2align 8")
    A.L.append(f".type {NAME},@function")
    A.label(NAME)
    A("s_cmp_ge_u32 s2, 256")
    A("s_cbranch_scc1 L_end")
    A("s_load_dwordx16 s[4:19], s[0:1], 0")
    A("s_load_dwordx8 s[20:27], s[0:1], 64")
    if o["stamp"]:
        A(f"v_mov_b32 {v(V_ST)}, 0")
        A("s_memrealtime s[98:99]")
    A(f"v_and_b32 {v(V_LANE)}, 63, v0")
    A(f"v_lshrrev_b32 {v(T)}, 6, v0")
    A(f"s_mov_b32 {s(S_ID)}, s2")
    A(f"v_readfirstlane_b32 {s(S_W)}, {v(T)}")
    A(f"s_and_b32 {s(S_H)}, s2, 7")
    A(f"s_lshl_b32 {s(S_H)}, {s(S_H)}, 2")
    A(f"s_bfe_u32 {s(S_HALF)}, s2, 0x20004")
    A(f"s_or_b32 {s(S_H)}, {s(S_H)}, {s(S_HALF)}")
    A(f"s_bfe_u32 {s(S_HALF)}, s2, 0x10003")
    A(f"s_lshr_b32 {s(S_B)}, s2, 6")
    A(f"s_lshl_b32 {s(S_J)}, {s(S_B)}, 1")
    A(f"s_or_b32 {s(S_J)}, {s(S_J)}, {s(S_HALF)}")
    A(f"s_lshl_b32 {s(S_T0)}, {s(S_B)}, 5")
    A(f"s_add_u32 {s(S_BH)}, {s(S_T0)}, {s(S_H)}")
    A(f"v_and_b32 {v(V_C)}, 15, {v(V_LANE)}")
    A(f"v_lshrrev_b32 {v(V_SG)}, 4, {v(V_LANE)}")
    A(f"v_lshlrev_b32 {v(T+1)}, 4, {v(V_LANE)}")
    A(f"v_lshlrev_b32 {v(T+2)}, 4, {v(V_C)}")
    A(f"s_lshl_b32 {s(S_T0)}, {s(S_BH)}, 20")
    A(f"s_lshl_b32 {s(S_T1)}, {s(S_HALF)}, 19")
    A(f"s_add_u32 {s(S_T0)}, {s(S_T0)}, {s(S_T1)}")
    A(f"s_lshl_b32 {s(S_T1)}, {s(S_W)}, 10")
    A(f"v_add_u32 {v(V_KOFF)}, {s(S_T1)}, {v(T+1)}")
    A(f"v_lshl_add_u32 {v(V_WQOFF)}, {v(V_SG)}, 13, {v(T+2)}")
    A(f"v_lshlrev_b32 {v(T+8)}, 2, {v(V_LANE)}")
    A(f"s_mul_i32 {s(S_T2)}, {s(S_J)}, 80")
    A(f"s_mul_i32 {s(S_T3)}, {s(S_W)}, 20")
    A(f"s_add_u32 {s(S_C1)}, {s(S_T2)}, {s(S_T3)}")
    A(f"s_lshl_b32 {s(S_T2)}, {s(S_C1)}, 13")
    A(f"s_lshl_b32 {s(S_T3)}, {s(S_H)}, 8")
    A(f"s_add_u32 {s(S_T2)}, {s(S_T2)}, {s(S_T3)}")
    A(f"s_mul_i32 {s(S_T1)}, {s(S_W)}, 1280")
    A("s_waitcnt lgkmcnt(0)")
    if o["stamp"]:
        A(f"v_writelane_b32 {v(V_ST)}, s98, 0"); nst[0] = 1
    A(f"s_load_dwordx2 {s(S_TLO,2)}, {s(P_WS,2)}, {EP_OFF}")
    def srd(r, p, size, add=None):
        if add is None:
            A(f"s_mov_b32 {s(r)}, {s(p)}")
            A(f"s_mov_b32 {s(r+1)}, {s(p+1)}")
        else:
            A(f"s_add_u32 {s(r)}, {s(p)}, {s(add)}")
            A(f"s_addc_u32 {s(r+1)}, {s(p+1)}, 0")
        A(f"s_mov_b32 {s(r+2)}, {size}")
        A(f"s_mov_b32 {s(r+3)}, 0x20000")
    srd(R_X, P_X, 5120)
    VX = T + 10
    xl = []
    for k in range(5):
        xl.append(A.vm(f"buffer_load_dword {v(VX+k)}, {v(T+8)}, {s(R_X,4)}, {s(S_T1)} offen offset:{256*k}"))
    srd(R_WQ, P_WQ, 640*8192)
    wq_idx = []
    for t in range(5):
        wq_idx.append(A.vm(f"buffer_load_dwordx4 {a(A_W+4*t,4)}, {v(V_WQOFF)}, {s(R_WQ,4)}, {s(S_T2)} offen{NTW}"))
        if t < 4: A(f"s_add_u32 {s(S_T2)}, {s(S_T2)}, 32768")
    srd(R_CUR, P_K, 1 << 19, add=S_T0)
    A(f"s_mov_b32 {s(S_SOFF)}, 0")
    k_idx = []
    def k_load(n=1):
        for _ in range(n):
            if len(k_idx) >= D: return
            i = len(k_idx)
            k_idx.append(A.vm(f"buffer_load_dwordx4 {v(V_BUF+4*i,4)}, {v(V_KOFF)}, {s(R_CUR,4)}, {s(S_SOFF)} offen{NTK}"))
            A(f"s_add_u32 {s(S_SOFF)}, {s(S_SOFF)}, 4096")
    k_load(2)
    srd(R_V, P_V, 1 << 19, add=S_T0)
    srd(R_WS, P_WS, WS_SIZE)
    srd(R_WO, P_WO, 4096*1280)
    srd(R_WD, P_WD, 1728*1280)
    srd(R_OUT, P_OUT, 5120)
    A(f"s_bitcmp1_b32 {s(S_ID)}, 2")
    A(f"s_cselect_b32 {s(R_F1)}, {s(P_WU)}, {s(P_WG)}")
    A(f"s_cselect_b32 {s(R_F1+1)}, {s(P_WU+1)}, {s(P_WG+1)}")
    A(f"s_cmp_lt_u32 {s(S_ID)}, 216")
    A(f"s_cselect_b32 {s(R_F1+2)}, {640*3456}, 0")
    A(f"s_mov_b32 {s(R_F1+3)}, 0x20000")
    A(f"v_mul_u32_u24 {v(V_WOOFF)}, 1280, {v(V_SG)}")
    A(f"v_add_u32 {v(V_WOOFF)}, {v(V_WOOFF)}, {v(T+2)}")
    t0, t1, t2 = T+16, T+17, T+18
    A(f"v_bfe_u32 {v(t0)}, {v(V_LANE)}, 3, 1")
    A(f"v_lshl_add_u32 {v(t0)}, {v(V_SG)}, 1, {v(t0)}")
    A(f"v_mul_u32_u24 {v(V_F1OFF)}, 3456, {v(t0)}")
    A(f"v_and_b32 {v(t1)}, 7, {v(V_LANE)}")
    A(f"v_lshl_add_u32 {v(V_F1OFF)}, {v(t1)}, 4, {v(V_F1OFF)}")
    A(f"s_and_b32 {s(S_T1)}, {s(S_ID)}, 3")
    A(f"s_mul_i32 {s(S_T1)}, {s(S_T1)}, 160")
    A(f"s_mul_i32 {s(S_T3)}, {s(S_W)}, 40")
    A(f"s_add_u32 {s(S_T4)}, {s(S_T1)}, {s(S_T3)}")
    A(f"s_mul_i32 {s(S_T1)}, {s(S_T4)}, 3456")
    A(f"s_lshr_b32 {s(S_C2)}, {s(S_ID)}, 3")
    A(f"s_lshl_b32 {s(S_T3)}, {s(S_C2)}, 7")
    A(f"s_add_u32 {s(S_T1)}, {s(S_T1)}, {s(S_T3)}")
    f1_idx = []
    def f1_load():
        tau = len(f1_idx)
        f1_idx.append(A.vm(f"buffer_load_dwordx4 {a(A_F1+4*tau,4)}, {v(V_F1OFF)}, {s(R_F1,4)}, {s(S_T0)} offen{NTW}"))
        if tau < 4: A(f"s_add_u32 {s(S_T0)}, {s(S_T0)}, {8*3456}")
    A(f"s_mov_b32 {s(S_T0)}, {s(S_T1)}")
    A(f"v_and_b32 {v(t0)}, 1, {v(V_LANE)}")
    A(f"v_cmp_eq_u32 vcc, 1, {v(t0)}")
    A(f"v_mov_b32 {v(t1)}, 0xffff")
    A(f"v_mov_b32 {v(t2)}, 0xffff0000")
    A(f"v_cndmask_b32 {v(t1)}, {v(t1)}, {v(t2)}, vcc")
    A(f"v_bfe_u32 {v(t0)}, {v(V_LANE)}, 1, 2")
    for t in range(4):
        A(f"v_cmp_eq_u32 vcc, {t}, {v(t0)}")
        A.nop(2)
        A(f"v_cndmask_b32 {v(V_M+t)}, 0, {v(t1)}, vcc")
    A(f"s_mov_b32 {s(S_M2)}, 0xcccccccc\ns_mov_b32 {s(S_M2+1)}, 0xcccccccc")
    A(f"s_mov_b32 {s(S_M1)}, 0xaaaaaaaa\ns_mov_b32 {s(S_M1+1)}, 0xaaaaaaaa")
    A(f"s_mov_b32 {s(S_FVAL)}, 0x00ff00ff\ns_mov_b32 {s(S_FVAL+1)}, 0xff00ff00")
    XA, XQ, XF = T+50, T+51, T+52
    A(f"v_and_b32 {v(XA)}, 1, {v(V_LANE)}")
    A(f"v_mul_u32_u24 {v(XA)}, 320, {v(XA)}")
    A(f"v_lshrrev_b32 {v(t0)}, 1, {v(V_LANE)}")
    A(f"v_add_lshl_u32 {v(XA)}, {v(XA)}, {v(t0)}, 2")
    A(f"s_mul_i32 {s(S_T1)}, {s(S_W)}, 2560")
    A(f"v_add_u32 {v(XA)}, {s(S_T1)}, {v(XA)}")
    A(f"v_bfe_u32 {v(XQ)}, {v(V_LANE)}, 3, 1")
    A(f"v_mul_u32_u24 {v(XQ)}, 2560, {v(XQ)}")
    A(f"v_mul_u32_u24 {v(t0)}, 640, {v(V_SG)}")
    A(f"v_add3_u32 {v(XQ)}, {v(XQ)}, {v(t0)}, {s(S_C1)}")
    A(f"v_bfe_u32 {v(t0)}, {v(V_LANE)}, 3, 1")
    A(f"v_lshl_add_u32 {v(t0)}, {v(V_SG)}, 1, {v(t0)}")
    A(f"v_and_b32 {v(t0)}, 3, {v(t0)}")
    A(f"v_mul_u32_u24 {v(XF)}, 160, {v(t0)}")
    A(f"v_lshrrev_b32 {v(t0)}, 1, {v(V_SG)}")
    A(f"v_add_u32 {v(XF)}, {v(XF)}, {v(t0)}")
    A(f"v_lshlrev_b32 {v(XF)}, 2, {v(XF)}")
    A(f"v_add_u32 {v(XF)}, {s(S_T4)}, {v(XF)}")
    A.wait_vm(xl[-1])
    F = T + 20
    DV = T + 32
    S1, S2, TM1, TM2, MEAN, MB, RS, SD = T+44, T+45, T+46, T+47, T+48, T+49, T+53, T+54
    for k in range(5):
        A(f"v_lshlrev_b32 {v(F+2*k)}, 16, {v(VX+k)}")
        A(f"v_and_b32 {v(F+2*k+1)}, 0xffff0000, {v(VX+k)}")
    A(f"v_readfirstlane_b32 {s(S_T1)}, {v(F)}")
    k_load(2)
    for k in range(10): A(f"v_subrev_f32 {v(DV+k)}, {s(S_T1)}, {v(F+k)}")
    A(f"v_add_f32 {v(S1)}, {v(DV)}, {v(DV+1)}")
    A(f"v_mul_f32 {v(S2)}, {v(DV)}, {v(DV)}")
    A(f"v_fmac_f32 {v(S2)}, {v(DV+1)}, {v(DV+1)}")
    for k in range(2, 10):
        A(f"v_add_f32 {v(S1)}, {v(S1)}, {v(DV+k)}")
        A(f"v_fmac_f32 {v(S2)}, {v(DV+k)}, {v(DV+k)}")
    f1_load(); f1_load()
    allreduce2(A, "v_add_f32", S1, S2, TM1, TM2)
    f1_load(); f1_load(); f1_load()
    A(f"v_mul_f32 {v(S1)}, {F32_INV640:#x}, {v(S1)}")
    A(f"v_mul_f32 {v(S2)}, {F32_INV640:#x}, {v(S2)}")
    A(f"v_add_f32 {v(MB)}, {s(S_T1)}, {v(S1)}")
    A(f"v_fma_f32 {v(S2)}, -{v(S1)}, {v(S1)}, {v(S2)}")
    rbf(A, MB, TM1)
    rbf(A, S2, TM2)
    A(f"v_add_f32 {v(S2)}, {F32_EPS:#x}, {v(S2)}")
    rbf(A, S2, TM2)
    A(f"v_sqrt_f32 {v(SD)}, {v(S2)}")
    A.nop(1)
    rbf(A, SD, TM2)
    A(f"v_rcp_f32 {v(RS)}, {v(SD)}")
    k_load(2)
    for k in range(10): A(f"v_sub_f32 {v(DV+k)}, {v(F+k)}, {v(MB)}")
    for k in range(5): A(f"v_cvt_pk_bf16_f32 {v(VX+k)}, {v(DV+2*k)}, {v(DV+2*k+1)}")
    for k in range(5):
        A(f"v_lshlrev_b32 {v(DV+2*k)}, 16, {v(VX+k)}")
        A(f"v_and_b32 {v(DV+2*k+1)}, 0xffff0000, {v(VX+k)}")
    for k in range(10): A(f"v_mul_f32 {v(DV+k)}, {v(DV+k)}, {v(RS)}")
    for k in range(10): A(f"v_cvt_pk_bf16_f32 {v(DV+k)}, {v(DV+k)}, {v(DV+k)}")
    for k in range(5):
        A(f"ds_write_b32 {v(XA)}, {v(DV+2*k)} offset:{L_XN + 128*k}")
        A(f"ds_write_b32 {v(XA)}, {v(DV+2*k+1)} offset:{L_XN + 128*k + 640}")
    k_load(2)
    A("s_waitcnt lgkmcnt(0)")
    A(f"s_add_u32 {s(S_TLO)}, {s(S_TLO)}, 1")
    A(f"s_add_u32 {s(S_THI)}, {s(S_THI)}, {TAG_HI_INC:#x}")
    A("s_barrier")
    stamp()
    XV = T
    for beta in range(2):
        for tau in range(5):
            A(f"ds_read_b32 {v(XV+5*beta+tau)}, {v(XQ)} offset:{L_XN + beta*5120 + 4*tau}")
    FX = T + 10
    for tau in range(5):
        for b in range(4):
            A(f"ds_read_b32 {v(FX+4*tau+b)}, {v(XF)} offset:{L_XN + b*2560 + tau*8}")
    QA = T + 55
    A(f"v_lshrrev_b32 {v(QA)}, 1, {v(V_SG)}")
    A(f"s_lshl_b32 {s(S_T1)}, {s(S_W)}, 2")
    A(f"v_add_u32 {v(QA)}, {s(S_T1)}, {v(QA)}")
    A(f"v_lshlrev_b32 {v(QA)}, 7, {v(QA)}")
    A(f"v_lshl_add_u32 {v(QA)}, {v(V_C)}, 3, {v(QA)}")
    A(f"v_and_b32 {v(T+56)}, 1, {v(V_SG)}")
    A(f"v_lshl_add_u32 {v(QA)}, {v(T+56)}, 2, {v(QA)}")
    A(f"v_lshlrev_b32 {v(QA)}, 2, {v(QA)}")
    def mkA(dst, src, masks=V_M):
        for k in range(4): A(f"v_and_b32 {v(dst+k)}, {v(src)}, {v(masks+k)}")
    A.wait_vm(wq_idx[-1], " lgkmcnt(0)")
    seq = [(beta, tau) for tau in range(5) for beta in range(2)]
    mkA(V_A0, XV + 5*seq[0][0] + seq[0][1])
    for n, (beta, tau) in enumerate(seq):
        cur, nxt = (V_A0, V_A1) if n % 2 == 0 else (V_A1, V_A0)
        if n + 1 < len(seq): mkA(nxt, XV + 5*seq[n+1][0] + seq[n+1][1])
        else: A.nop(2)
        c = "0" if tau == 0 else a(A_Q+4*beta, 4)
        A(f"v_mfma_f32_16x16x32_bf16 {a(A_Q+4*beta,4)}, {v(cur,4)}, {a(A_W+4*tau,4)}, {c}")
    k_load(2)
    A.nop(4)
    for beta in range(2):
        A(f"ds_write_b128 {v(QA)}, {a(A_Q+4*beta,4)} offset:{L_QP + beta*1024}")
    QR = T + 56
    A(f"v_lshlrev_b32 {v(QR)}, 3, {v(V_LANE)}")
    A(f"s_lshl_b32 {s(S_T1)}, {s(S_W)}, 9")
    A(f"v_add_u32 {v(QR)}, {s(S_T1)}, {v(QR)}")
    A("s_waitcnt lgkmcnt(0)")
    A("s_barrier")
    for w in range(4):
        A(f"ds_read_b64 {v(T+32+2*w,2)}, {v(QR)} offset:{L_QP + w*2048}")
    A(f"s_lshl_b32 {s(S_T1)}, {s(S_H)}, 2")
    A(f"s_add_u32 {s(S_T1)}, {s(S_T1)}, {s(S_W)}")
    A(f"s_lshl_b32 {s(S_T1)}, {s(S_T1)}, 3")
    A(f"s_add_u32 {s(S_T1)}, {s(S_T1)}, {s(S_J)}")
    A(f"s_lshl_b32 {s(S_T1)}, {s(S_T1)}, 10")
    A(f"s_add_u32 {s(S_T1)}, {s(S_T1)}, {QX_OFF}")
    A(f"v_lshlrev_b32 {v(T+48)}, 4, {v(V_LANE)}")
    A(f"v_mov_b32 {v(T+41)}, {s(S_TLO)}")
    A(f"v_mov_b32 {v(T+43)}, {s(S_THI)}")
    A("s_waitcnt lgkmcnt(0)")
    A(f"v_add_f32 {v(T+32)}, {v(T+32)}, {v(T+34)}")
    A(f"v_add_f32 {v(T+33)}, {v(T+33)}, {v(T+35)}")
    A(f"v_add_f32 {v(T+36)}, {v(T+36)}, {v(T+38)}")
    A(f"v_add_f32 {v(T+37)}, {v(T+37)}, {v(T+39)}")
    A(f"v_add_f32 {v(T+40)}, {v(T+32)}, {v(T+36)}")
    A(f"v_add_f32 {v(T+42)}, {v(T+33)}, {v(T+37)}")
    A.vm(f"buffer_store_dwordx4 {v(T+40,4)}, {v(T+48)}, {s(R_WS,4)}, {s(S_T1)} offen{STF}")
    stamp()
    A.wait_vm(f1_idx[-1])
    seq = [(tau, b) for tau in range(5) for b in range(4)]
    mkA(V_A0, FX)
    for n, (tau, b) in enumerate(seq):
        cur, nxt = (V_A0, V_A1) if n % 2 == 0 else (V_A1, V_A0)
        if n + 1 < len(seq): mkA(nxt, FX + n + 1)
        else: A.nop(2)
        c = "0" if tau == 0 else a(A_F+4*b, 4)
        A(f"v_mfma_f32_16x16x32_bf16 {a(A_F+4*b,4)}, {v(cur,4)}, {a(A_F1+4*tau,4)}, {c}")
        if n % 5 == 4: k_load(1)
    FA = T + 57
    A(f"v_bfe_u32 {v(FA)}, {v(V_LANE)}, 3, 1")
    A(f"v_lshlrev_b32 {v(FA)}, 6, {v(FA)}")
    A(f"v_and_b32 {v(T+56)}, 7, {v(V_LANE)}")
    A(f"v_lshl_add_u32 {v(FA)}, {v(T+56)}, 3, {v(FA)}")
    A(f"v_and_b32 {v(T+56)}, 1, {v(V_SG)}")
    A(f"v_lshl_add_u32 {v(FA)}, {v(T+56)}, 2, {v(FA)}")
    A(f"s_lshl_b32 {s(S_T1)}, {s(S_W)}, 9")
    A(f"v_add_lshl_u32 {v(FA)}, {v(FA)}, {s(S_T1)}, 2")
    A.nop(4)
    A(f"s_mov_b64 exec, {s(S_FVAL,2)}")
    for b in range(4):
        A(f"ds_write_b128 {v(FA)}, {a(A_F+4*b,4)} offset:{L_FP + b*512}")
    A("s_mov_b64 exec, -1")
    while len(k_idx) < o["gpos"]: k_load(1)
    G = T + 44 - 44 + 0
    G = T
    A(f"s_lshl_b32 {s(S_T1)}, {s(S_H)}, 2")
    A(f"s_add_u32 {s(S_T1)}, {s(S_T1)}, {s(S_B)}")
    A(f"s_lshl_b32 {s(S_T1)}, {s(S_T1)}, 3")
    A(f"s_lshl_b32 {s(S_T2)}, {s(S_W)}, 1")
    A(f"s_add_u32 {s(S_T1)}, {s(S_T1)}, {s(S_T2)}")
    A(f"s_lshl_b32 {s(S_T1)}, {s(S_T1)}, 10")
    A(f"s_add_u32 {s(S_T2)}, {s(S_T1)}, {QX_OFF}")
    gq = []
    def qgather():
        gq.append(A.vm(f"buffer_load_dwordx4 {v(G,4)}, {v(T+48)}, {s(R_WS,4)}, {s(S_T2)} offen{LDF}"))
        gq.append(A.vm(f"buffer_load_dwordx4 {v(G+4,4)}, {v(T+48)}, {s(R_WS,4)}, {s(S_T2)} offen offset:1024{LDF}"))
    qgather()
    k_load(D)
    spin_id = [0]
    def tagchk(regs, acc, first=True):
        for n, r in enumerate(regs):
            A(f"v_xor_b32 {v(r+1)}, {s(S_TLO)}, {v(r+1)}")
            A(f"v_xor_b32 {v(r+3)}, {s(S_THI)}, {v(r+3)}")
            if n == 0 and first: A(f"v_or_b32 {v(acc)}, {v(r+1)}, {v(r+3)}")
            else: A(f"v_or3_b32 {v(acc)}, {v(acc)}, {v(r+1)}, {v(r+3)}")
        A(f"v_cmp_ne_u32 vcc, 0, {v(acc)}")
    def spin_check(check, reload_, slp=2, count_slot=None):
        i = spin_id[0]; spin_id[0] += 1
        A(f"s_mov_b32 {s(S_SPIN)}, 0")
        A.label(f"L_sp{i}")
        check()
        A.nop(5)
        A(f"s_cbranch_vccz L_spd{i}")
        A(f"s_add_u32 {s(S_SPIN)}, {s(S_SPIN)}, 1")
        A(f"s_cmp_ge_u32 {s(S_SPIN)}, {SPIN_MAX}")
        A(f"s_cbranch_scc1 L_spd{i}")
        A(f"s_sleep {slp}")
        f = A.fifo
        reload_()
        A.fifo = f
        A("s_waitcnt vmcnt(0)")
        A(f"s_branch L_sp{i}")
        A.label(f"L_spd{i}")
        if count_slot is not None and o["stamp"]:
            A(f"v_writelane_b32 {v(V_ST)}, {s(S_SPIN)}, {count_slot}")
    A.wait_vm(gq[1])
    spin_check(lambda: tagchk([G, G+4], T+8), lambda: qgather(), count_slot=14)
    A(f"v_add_f32 {v(T+10)}, {v(G)}, {v(G+4)}")
    A(f"v_add_f32 {v(T+11)}, {v(G+2)}, {v(G+6)}")
    A(f"v_lshlrev_b32 {v(T+12)}, 3, {v(V_LANE)}")
    A(f"s_lshl_b32 {s(S_T1)}, {s(S_W)}, 9")
    A(f"v_add_u32 {v(T+12)}, {s(S_T1)}, {v(T+12)}")
    A(f"ds_write_b64 {v(T+12)}, {v(T+10,2)} offset:{L_QG}")
    QR = T + 60
    A(f"v_lshlrev_b32 {v(QR)}, 5, {v(V_C)}")
    FRD = T + 61
    A(f"v_and_b32 {v(FRD)}, 31, {v(V_LANE)}")
    A(f"v_lshlrev_b32 {v(FRD)}, 3, {v(FRD)}")
    A(f"v_add_u32 {v(FRD)}, {s(S_T1)}, {v(FRD)}")
    A("s_waitcnt lgkmcnt(0)")
    A("s_barrier")
    for w in range(4):
        A(f"ds_read_b128 {v(T+8*w,4)}, {v(QR)} offset:{L_QG + w*512}")
        A(f"ds_read_b128 {v(T+8*w+4,4)}, {v(QR)} offset:{L_QG + w*512 + 16}")
    for w in range(4):
        for rp in range(2):
            A(f"ds_read_b64 {v(T+32+4*w+2*rp,2)}, {v(FRD)} offset:{L_FP + w*2048 + rp*256}")
    A(f"s_and_b32 {s(S_T1)}, {s(S_ID)}, 3")
    A(f"s_lshl_b32 {s(S_T1)}, {s(S_T1)}, 1")
    A(f"s_bfe_u32 {s(S_T3)}, {s(S_ID)}, 0x10002")
    A(f"s_add_u32 {s(S_T1)}, {s(S_T1)}, {s(S_T3)}")
    A(f"s_lshl_b32 {s(S_T1)}, {s(S_T1)}, 2")
    A(f"s_add_u32 {s(S_T1)}, {s(S_T1)}, {s(S_W)}")
    A(f"s_mul_i32 {s(S_T1)}, {s(S_T1)}, {F_ROW}")
    A(f"s_lshl_b32 {s(S_T3)}, {s(S_C2)}, 9")
    A(f"s_add_u32 {s(S_T1)}, {s(S_T1)}, {s(S_T3)}")
    A(f"s_add_u32 {s(S_T1)}, {s(S_T1)}, {F_OFF}")
    A("s_waitcnt lgkmcnt(8)")
    for e in range(8):
        A(f"v_add_f32 {v(T+e)}, {v(T+e)}, {v(T+8+e)}")
        A(f"v_add_f32 {v(T+16+e)}, {v(T+16+e)}, {v(T+24+e)}")
    for e in range(8): A(f"v_add_f32 {v(T+e)}, {v(T+e)}, {v(T+16+e)}")
    for k in range(4): A(f"v_cvt_pk_bf16_f32 {v(V_Q+k)}, {v(T+2*k)}, {v(T+2*k+1)}")
    A("s_waitcnt lgkmcnt(0)")
    for e in range(2):
        A(f"v_add_f32 {v(T+32+e)}, {v(T+32+e)}, {v(T+34+e)}")
        A(f"v_add_f32 {v(T+36+e)}, {v(T+36+e)}, {v(T+38+e)}")
        A(f"v_add_f32 {v(T+40+e)}, {v(T+40+e)}, {v(T+42+e)}")
        A(f"v_add_f32 {v(T+44+e)}, {v(T+44+e)}, {v(T+46+e)}")
        A(f"v_add_f32 {v(T+32+e)}, {v(T+32+e)}, {v(T+36+e)}")
        A(f"v_add_f32 {v(T+40+e)}, {v(T+40+e)}, {v(T+44+e)}")
    A(f"v_add_f32 {v(T+52)}, {v(T+32)}, {v(T+40)}")
    A(f"v_add_f32 {v(T+54)}, {v(T+33)}, {v(T+41)}")
    A(f"v_mov_b32 {v(T+53)}, {s(S_TLO)}")
    A(f"v_mov_b32 {v(T+55)}, {s(S_THI)}")
    A(f"s_cmp_lt_u32 {s(S_ID)}, 216")
    A("s_cbranch_scc0 L_nofpub")
    A("s_mov_b32 exec_hi, 0")
    A(f"buffer_store_dwordx4 {v(T+52,4)}, {v(T+48)}, {s(R_WS,4)}, {s(S_T1)} offen{STF}")
    A("s_mov_b32 exec_hi, -1")
    A.label("L_nofpub")
    if o["dump"] == "q":
        dump(A, [V_Q, V_Q+1, V_Q+2, V_Q+3, T+52, T+54])
    def wo_loads(tau0):
        if o["nowo"]: return
        for tau in (tau0, tau0+1):
            for u in range(5):
                A.vm(f"buffer_load_dwordx4 {a(A_W+4*(tau*5+u),4)}, {v(V_WOOFF)}, {s(R_WO,4)}, {s(S_WOOFF)} offen offset:{256*u}{NTW}")
            A(f"s_add_u32 {s(S_WOOFF)}, {s(S_WOOFF)}, {4*1280}")
    A(f"s_lshl_b32 {s(S_T1)}, {s(S_H)}, 7")
    A(f"s_lshl_b32 {s(S_T3)}, {s(S_W)}, 5")
    A(f"s_add_u32 {s(S_T1)}, {s(S_T1)}, {s(S_T3)}")
    A(f"s_mul_i32 {s(S_WOOFF)}, {s(S_T1)}, 1280")
    def call(lbl):
        A(f"s_call_b64 {s(S_RET,2)}, {lbl}")
    def savesc(k):
        A(f"v_mov_b32 {v(V_SC+2*k)}, {v(V_PC0)}\nv_mov_b32 {v(V_SC+2*k+1)}, {v(V_PC1)}")
    stamp()
    call("L_kbody"); savesc(0)
    stamp()
    wo_loads(0)
    call("L_kbody"); savesc(1); wo_loads(2)
    call("L_kbody"); savesc(2); wo_loads(4)
    for i in range(4): A(f"s_mov_b32 {s(R_CUR+i)}, {s(R_V+i)}")
    A(f"s_mov_b32 {s(S_SOFF)}, 0")
    call("L_kbody"); savesc(3); wo_loads(6)
    stamp()
    def rnd8():
        for k in range(4):
            A(f"v_cvt_pk_bf16_f32 {v(T+k)}, {v(V_SC+2*k)}, {v(V_SC+2*k+1)}")
        for k in range(4):
            A(f"v_lshlrev_b32 {v(V_SC+2*k)}, 16, {v(T+k)}")
            A(f"v_and_b32 {v(V_SC+2*k+1)}, 0xffff0000, {v(T+k)}")
    rnd8()
    for k in range(8): A(f"v_mul_f32 {v(V_SC+k)}, {F32_SCALE:#x}, {v(V_SC+k)}")
    rnd8()
    A(f"v_max3_f32 {v(V_MW)}, {v(V_SC)}, {v(V_SC+1)}, {v(V_SC+2)}")
    A(f"v_max3_f32 {v(V_MW)}, {v(V_MW)}, {v(V_SC+3)}, {v(V_SC+4)}")
    A(f"v_max3_f32 {v(V_MW)}, {v(V_MW)}, {v(V_SC+5)}, {v(V_SC+6)}")
    A(f"v_max_f32 {v(V_MW)}, {v(V_MW)}, {v(V_SC+7)}")
    allreduce(A, "v_max_f32", V_MW, T+8)
    for k in range(8): A(f"v_sub_f32 {v(V_SC+k)}, {v(V_SC+k)}, {v(V_MW)}")
    for k in range(8): A(f"v_mul_f32 {v(V_SC+k)}, {F32_LOG2E:#x}, {v(V_SC+k)}")
    for k in range(8): A(f"v_exp_f32 {v(V_SC+k)}, {v(V_SC+k)}")
    A.nop(1)
    A(f"v_add_f32 {v(V_LW)}, {v(V_SC)}, {v(V_SC+1)}")
    for k in range(2, 8): A(f"v_add_f32 {v(V_LW)}, {v(V_LW)}, {v(V_SC+k)}")
    for k in range(8): A(f"v_cvt_pk_bf16_f32 {v(V_SC+k)}, {v(V_SC+k)}, {v(V_SC+k)}")
    allreduce(A, "v_add_f32", V_LW, T+8)
    A(f"s_lshl_b32 {s(S_T1)}, {s(S_BH)}, 7")
    A(f"s_lshl_b32 {s(S_T3)}, {s(S_HALF)}, 2")
    A(f"s_add_u32 {s(S_T3)}, {s(S_T3)}, {s(S_W)}")
    A(f"s_lshl_b32 {s(S_T3)}, {s(S_T3)}, 4")
    A(f"s_add_u32 {s(S_T1)}, {s(S_T1)}, {s(S_T3)}")
    A(f"s_add_u32 {s(S_T1)}, {s(S_T1)}, {ST_OFF}")
    A(f"v_mov_b32 {v(T)}, {v(V_MW)}\nv_mov_b32 {v(T+1)}, {s(S_TLO)}\nv_mov_b32 {v(T+2)}, {v(V_LW)}\nv_mov_b32 {v(T+3)}, {s(S_THI)}\nv_mov_b32 {v(T+4)}, 0")
    A("s_mov_b64 exec, 1")
    A(f"buffer_store_dwordx4 {v(T,4)}, {v(T+4)}, {s(R_WS,4)}, {s(S_T1)} offen{STF}")
    A("s_mov_b64 exec, -1")
    def setpc_(k):
        A(f"v_mov_b32 {v(V_PC0)}, {v(V_SC+2*k)}\nv_mov_b32 {v(V_PC1)}, {v(V_SC+2*k+1)}")
    A.nop(1)
    for i in range(4): A(f"v_mov_b32 {v(V_O+i)}, 0")
    setpc_(0)
    call("L_vbody"); setpc_(1)
    A(f"s_lshl_b32 {s(S_T1)}, {s(S_H)}, 1")
    A(f"s_add_u32 {s(S_T1)}, {s(S_T1)}, {s(S_HALF)}")
    A(f"s_mul_i32 {s(S_T4)}, {s(S_T1)}, 27")
    A(f"s_lshl_b32 {s(S_T3)}, {s(S_W)}, 2")
    A(f"s_add_u32 {s(S_T1)}, {s(S_T4)}, {s(S_T3)}")
    A(f"s_mul_i32 {s(S_T2)}, {s(S_T1)}, 1280")
    for cp in range(2):
        for u in range(5):
            A(f"buffer_load_dwordx4 {a(A_WD+4*(cp*5+u),4)}, {v(V_WOOFF)}, {s(R_WD,4)}, {s(S_T2)} offen offset:{256*u}{NTW}")
        if cp == 0: A(f"s_add_u32 {s(S_T2)}, {s(S_T2)}, {16*1280}")
    GV = T + 60
    GP = T + 62
    G = T + 8
    GS = T + 40
    A(f"v_lshl_add_u32 {v(GV)}, {v(V_C)}, 4, {v(V_SG)}")
    A(f"v_add_u32 {v(GV)}, {s(S_T3)}, {v(GV)}")
    A(f"v_cmp_gt_u32 {s(S_GVAL,2)}, 27, {v(GV)}")
    A(f"v_add_u32 {v(GV)}, {s(S_T4)}, {v(GV)}")
    A(f"v_and_b32 {v(GP)}, 1, {v(GV)}")
    A(f"v_lshrrev_b32 {v(GV)}, 1, {v(GV)}")
    A(f"v_lshlrev_b32 {v(GV)}, 4, {v(GV)}")
    A(f"s_mul_i32 {s(S_T1)}, {s(S_B)}, {F_ROW}")
    A(f"v_add_u32 {v(GV)}, {s(S_T1)}, {v(GV)}")
    A(f"v_mov_b32 {v(T)}, 0x7ffffff0")
    A(f"v_cndmask_b32 {v(GV)}, {v(T)}, {v(GV)}, {s(S_GVAL,2)}")
    SV = T + 61
    A(f"v_and_b32 {v(SV)}, 7, {v(V_LANE)}")
    A(f"v_lshlrev_b32 {v(SV)}, 4, {v(SV)}")
    def gather():
        for k in range(8):
            A(f"s_mov_b32 {s(S_T1)}, {F_OFF + k*4*F_ROW}")
            A(f"buffer_load_dwordx4 {v(G+4*k,4)}, {v(GV)}, {s(R_WS,4)}, {s(S_T1)} offen{LDF}")
        A(f"s_lshl_b32 {s(S_T1)}, {s(S_BH)}, 7")
        A(f"s_add_u32 {s(S_T1)}, {s(S_T1)}, {ST_OFF}")
        A(f"buffer_load_dwordx4 {v(GS,4)}, {v(SV)}, {s(R_WS,4)}, {s(S_T1)} offen{LDF}")
    gather()
    A(f"s_mul_i32 {s(S_T1)}, {s(S_ID)}, 205")
    A(f"s_lshr_b32 {s(S_C1)}, {s(S_T1)}, 13")
    A(f"s_mul_i32 {s(S_T1)}, {s(S_C1)}, 40")
    A(f"s_sub_u32 {s(S_C2)}, {s(S_ID)}, {s(S_T1)}")
    A(f"v_and_b32 {v(T)}, 7, {v(V_LANE)}")
    A(f"v_lshrrev_b32 {v(T+1)}, 5, {v(V_LANE)}")
    A(f"v_lshl_add_u32 {v(T)}, {v(T)}, 1, {v(T+1)}")
    A(f"s_lshl_b32 {s(S_T1)}, {s(S_C2)}, 4")
    A(f"s_mul_i32 {s(S_T3)}, {s(S_C1)}, 640")
    A(f"s_add_u32 {s(S_T1)}, {s(S_T1)}, {s(S_T3)}")
    A(f"v_add_lshl_u32 {v(V_F1OFF)}, {v(T)}, {s(S_T1)}, 1")
    A(f"buffer_load_ushort {v(V_CX)}, {v(V_F1OFF)}, {s(R_X,4)}, 0 offen")
    call("L_vbody"); setpc_(2)
    stamp()
    def chk_g():
        tagchk([G+4*k for k in range(8)], T)
        A.nop(2)
        A(f"s_and_b64 vcc, vcc, {s(S_GVAL,2)}")
        tag2 = T + 1
        A(f"v_xor_b32 {v(GS+1)}, {s(S_TLO)}, {v(GS+1)}")
        A(f"v_xor_b32 {v(GS+3)}, {s(S_THI)}, {v(GS+3)}")
        A(f"v_or_b32 {v(tag2)}, {v(GS+1)}, {v(GS+3)}")
        A(f"v_cmp_ne_u32 {s(S_EX,2)}, 0, {v(tag2)}")
        A.nop(2)
        A(f"s_or_b64 vcc, vcc, {s(S_EX,2)}")
    spin_check(chk_g, gather, count_slot=15)
    A(f"v_cmp_eq_u32 vcc, 1, {v(GP)}")
    A.nop(2)
    for k in range(8):
        A(f"v_cndmask_b32 {v(G+4*k)}, {v(G+4*k)}, {v(G+4*k+2)}, vcc")
    g_, u_, z_, t_ = T, T+1, T+2, T+3
    A(f"v_add_f32 {v(g_)}, {v(G)}, {v(G+8)}\nv_add_f32 {v(g_)}, {v(g_)}, {v(G+16)}\nv_add_f32 {v(g_)}, {v(g_)}, {v(G+24)}")
    A(f"v_add_f32 {v(u_)}, {v(G+4)}, {v(G+12)}\nv_add_f32 {v(u_)}, {v(u_)}, {v(G+20)}\nv_add_f32 {v(u_)}, {v(u_)}, {v(G+28)}")
    rbf(A, g_, t_); rbf(A, u_, t_)
    A(f"v_mul_f32 {v(z_)}, {v(g_)}, {v(g_)}")
    A(f"v_mul_f32 {v(z_)}, 0x3d372713, {v(z_)}")
    A(f"v_add_f32 {v(z_)}, 1.0, {v(z_)}")
    A(f"v_mul_f32 {v(z_)}, {v(z_)}, {v(g_)}")
    A(f"v_mul_f32 {v(z_)}, 0xc0135761, {v(z_)}")
    A(f"v_exp_f32 {v(z_)}, {v(z_)}")
    A.nop(1)
    A(f"v_add_f32 {v(z_)}, 1.0, {v(z_)}")
    A(f"v_rcp_f32 {v(z_)}, {v(z_)}")
    A.nop(1)
    A(f"v_mul_f32 {v(z_)}, {v(z_)}, {v(g_)}")
    rbf(A, z_, t_)
    A(f"v_mul_f32 {v(z_)}, {v(z_)}, {v(u_)}")
    A(f"v_cvt_pk_bf16_f32 {v(z_)}, {v(z_)}, {v(z_)}")
    A(f"v_cmp_gt_u32 vcc, 8, {v(V_C)}")
    A.nop(2)
    for t in range(4):
        A(f"v_cndmask_b32 {v(V_ML+t)}, 0, {v(V_M+t)}, vcc")
    for cp in range(2):
        dst = V_A0 if cp == 0 else V_A1
        for k in range(4):
            A(f"v_and_b32_dpp {v(dst+k)}, {v(z_)}, {v(V_ML+k)} row_newbcast:{cp} row_mask:0xf bank_mask:0xf")
    A.nop(2)
    for cp in range(2):
        dst = V_A0 if cp == 0 else V_A1
        for u in range(5):
            c = "0" if cp == 0 else a(A_Y+4*u, 4)
            A(f"v_mfma_f32_16x16x32_bf16 {a(A_Y+4*u,4)}, {v(dst,4)}, {a(A_WD+4*(cp*5+u),4)}, {c}")
    m_, l_, mg = GS, GS+2, T+4
    A(f"v_mov_b32 {v(mg)}, {v(m_)}")
    A.nop(2)
    A(f"v_max_f32_dpp {v(mg)}, {v(mg)}, {v(mg)} quad_perm:[1,0,3,2] row_mask:0xf bank_mask:0xf")
    A.nop(2)
    A(f"v_max_f32_dpp {v(mg)}, {v(mg)}, {v(mg)} quad_perm:[2,3,0,1] row_mask:0xf bank_mask:0xf")
    A.nop(2)
    A(f"v_max_f32_dpp {v(mg)}, {v(mg)}, {v(mg)} row_half_mirror row_mask:0xf bank_mask:0xf")
    A(f"v_sub_f32 {v(m_)}, {v(m_)}, {v(mg)}")
    A(f"v_mul_f32 {v(m_)}, {F32_LOG2E:#x}, {v(m_)}")
    A(f"v_exp_f32 {v(m_)}, {v(m_)}")
    A.nop(1)
    A(f"v_mul_f32 {v(l_)}, {v(l_)}, {v(m_)}")
    A.nop(2)
    A(f"v_add_f32_dpp {v(l_)}, {v(l_)}, {v(l_)} quad_perm:[1,0,3,2] row_mask:0xf bank_mask:0xf")
    A.nop(2)
    A(f"v_add_f32_dpp {v(l_)}, {v(l_)}, {v(l_)} quad_perm:[2,3,0,1] row_mask:0xf bank_mask:0xf")
    A.nop(2)
    A(f"v_add_f32_dpp {v(l_)}, {v(l_)}, {v(l_)} row_half_mirror row_mask:0xf bank_mask:0xf")
    A(f"v_sub_f32 {v(V_FAC)}, {v(V_MW)}, {v(mg)}")
    A(f"v_mul_f32 {v(V_FAC)}, {F32_LOG2E:#x}, {v(V_FAC)}")
    A(f"v_exp_f32 {v(V_FAC)}, {v(V_FAC)}")
    A(f"v_rcp_f32 {v(l_)}, {v(l_)}")
    A.nop(1)
    A(f"v_mul_f32 {v(V_FAC)}, {v(V_FAC)}, {v(l_)}")
    A(f"v_lshlrev_b32 {v(V_CX)}, 16, {v(V_CX)}")
    call("L_vbody"); setpc_(3)
    if o["pretouch"]:
        A(f"buffer_load_ushort {v(T+50)}, {v(V_F1OFF)}, {s(R_OUT,4)}, 0 offen")
    call("L_vdrain")
    stamp()
    A.nop(8)
    for i in range(4): A(f"v_mul_f32 {v(V_O+i)}, {v(V_O+i)}, {v(V_FAC)}")
    if o["dump"] == "o": dump(A, [V_O, V_O+1, V_O+2, V_O+3, V_FAC, V_MW, V_LW])
    OA = T
    A(f"v_and_b32 {v(OA)}, 1, {v(V_SG)}")
    A(f"v_lshlrev_b32 {v(OA)}, 2, {v(OA)}")
    A(f"v_lshl_add_u32 {v(OA)}, {v(V_C)}, 3, {v(OA)}")
    A(f"s_lshl_b32 {s(S_T1)}, {s(S_W)}, 7")
    A(f"v_add_lshl_u32 {v(OA)}, {v(OA)}, {s(S_T1)}, 2")
    A("s_mov_b32 exec_hi, 0")
    A(f"ds_write_b128 {v(OA)}, {v(V_O,4)} offset:{L_OP}")
    A("s_mov_b32 exec_hi, -1")
    A(f"v_and_b32 {v(T+1)}, 7, {v(V_C)}")
    A(f"v_lshl_add_u32 {v(T+1)}, {v(T+1)}, 2, {v(V_SG)}")
    A(f"s_lshl_b32 {s(S_T1)}, {s(S_W)}, 5")
    A(f"v_add_lshl_u32 {v(T+1)}, {v(T+1)}, {s(S_T1)}, 2")
    A("s_waitcnt lgkmcnt(0)")
    A("s_barrier")
    stamp()
    for w in range(4): A(f"ds_read_b32 {v(T+4+w)}, {v(T+1)} offset:{L_OP + w*512}")
    A("s_waitcnt lgkmcnt(0)")
    A(f"v_add_f32 {v(T+4)}, {v(T+4)}, {v(T+5)}\nv_add_f32 {v(T+6)}, {v(T+6)}, {v(T+7)}\nv_add_f32 {v(T+4)}, {v(T+4)}, {v(T+6)}")
    PH, PL = T+8, T+9
    A(f"v_cvt_pk_bf16_f32 {v(PH)}, {v(T+4)}, {v(T+4)}")
    A(f"v_and_b32 {v(T+5)}, 0xffff0000, {v(PH)}")
    A(f"v_sub_f32 {v(T+5)}, {v(T+4)}, {v(T+5)}")
    A(f"v_cvt_pk_bf16_f32 {v(PL)}, {v(T+5)}, {v(T+5)}")
    A.nop(2)
    def mkY(dst, tau):
        for k in range(4):
            A(f"v_and_b32_dpp {v(dst+k)}, {v(PH)}, {v(V_M+k)} row_newbcast:{tau} row_mask:0xf bank_mask:0x3")
            A(f"v_and_b32_dpp {v(dst+k)}, {v(PL)}, {v(V_M+k)} row_newbcast:{tau} row_mask:0xf bank_mask:0xc")
    mkY(V_A0, 0)
    for tau in range(8):
        cur, nxt = (V_A0, V_A1) if tau % 2 == 0 else (V_A1, V_A0)
        if tau + 1 < 8: mkY(nxt, tau + 1)
        for u in range(5):
            A(f"v_mfma_f32_16x16x32_bf16 {a(A_Y+4*u,4)}, {v(cur,4)}, {a(A_W+4*(tau*5+u),4)}, {a(A_Y+4*u,4)}")
    YA = T + 10
    A(f"v_lshrrev_b32 {v(YA)}, 1, {v(V_SG)}")
    A(f"s_lshl_b32 {s(S_T1)}, {s(S_W)}, 1")
    A(f"v_add_u32 {v(YA)}, {s(S_T1)}, {v(YA)}")
    A(f"v_mul_u32_u24 {v(YA)}, 640, {v(YA)}")
    A(f"v_lshl_add_u32 {v(YA)}, {v(V_C)}, 3, {v(YA)}")
    A(f"v_and_b32 {v(T+11)}, 1, {v(V_SG)}")
    A(f"v_lshl_add_u32 {v(YA)}, {v(T+11)}, 2, {v(YA)}")
    A(f"v_lshlrev_b32 {v(YA)}, 2, {v(YA)}")
    A.nop(2)
    for u in range(5):
        A(f"ds_write_b128 {v(YA)}, {a(A_Y+4*u,4)} offset:{L_YP + 512*u}")
    A("s_waitcnt lgkmcnt(0)")
    A("s_barrier")
    stamp()
    A(f"s_cmp_eq_u32 {s(S_W)}, 3")
    A("s_cbranch_scc1 L_cons")
    A(f"v_lshlrev_b32 {v(T)}, 3, v0")
    for k in range(8): A(f"ds_read_b64 {v(T+4+2*k,2)}, {v(T)} offset:{L_YP + 2560*k}")
    A(f"s_cmp_eq_u32 {s(S_W)}, 2")
    A("s_cbranch_scc1 L_y1")
    for k in range(8): A(f"ds_read_b64 {v(T+24+2*k,2)}, {v(T)} offset:{L_YP + 2560*k + 1536}")
    A.label("L_y1")
    A(f"v_lshlrev_b32 {v(T+1)}, 4, v0")
    A(f"s_mul_i32 {s(S_T1)}, {s(S_ID)}, 5120")
    A(f"s_add_u32 {s(S_T1)}, {s(S_T1)}, {Y_OFF}")
    def ysum(base, dst):
        for e in range(2):
            A(f"v_add_f32 {v(base+e)}, {v(base+e)}, {v(base+2+e)}")
            A(f"v_add_f32 {v(base+4+e)}, {v(base+4+e)}, {v(base+6+e)}")
            A(f"v_add_f32 {v(base+8+e)}, {v(base+8+e)}, {v(base+10+e)}")
            A(f"v_add_f32 {v(base+12+e)}, {v(base+12+e)}, {v(base+14+e)}")
        for e in range(2):
            A(f"v_add_f32 {v(base+e)}, {v(base+e)}, {v(base+4+e)}")
            A(f"v_add_f32 {v(base+8+e)}, {v(base+8+e)}, {v(base+12+e)}")
        A(f"v_add_f32 {v(dst)}, {v(base)}, {v(base+8)}")
        A(f"v_add_f32 {v(dst+2)}, {v(base+1)}, {v(base+9)}")
        A(f"v_mov_b32 {v(dst+1)}, {s(S_TLO)}")
        A(f"v_mov_b32 {v(dst+3)}, {s(S_THI)}")
    A("s_waitcnt lgkmcnt(0)")
    ysum(T+4, T+44)
    A(f"buffer_store_dwordx4 {v(T+44,4)}, {v(T+1)}, {s(R_WS,4)}, {s(S_T1)} offen{STF}")
    A(f"s_cmp_eq_u32 {s(S_W)}, 2")
    A("s_cbranch_scc1 L_y2")
    ysum(T+24, T+48)
    A(f"buffer_store_dwordx4 {v(T+48,4)}, {v(T+1)}, {s(R_WS,4)}, {s(S_T1)} offen offset:3072{STF}")
    A.label("L_y2")
    if o["stamp"]:
        A("s_waitcnt vmcnt(0)")
        stamp_out()
    A("s_endpgm")
    A.label("L_cons")
    A(f"s_cmp_lt_u32 {s(S_ID)}, 160")
    A("s_cbranch_scc0 L_end")
    A(f"v_lshrrev_b32 {v(T)}, 3, {v(V_LANE)}")
    A(f"v_mul_u32_u24 {v(T)}, 5120, {v(T)}")
    A(f"v_and_b32 {v(T+1)}, 7, {v(V_LANE)}")
    A(f"v_lshl_add_u32 {v(T)}, {v(T+1)}, 4, {v(T)}")
    A(f"s_mul_i32 {s(S_T2)}, {s(S_C1)}, {64*5120}")
    A(f"s_lshl_b32 {s(S_T3)}, {s(S_C2)}, 7")
    A(f"s_add_u32 {s(S_T2)}, {s(S_T2)}, {s(S_T3)}")
    A(f"s_add_u32 {s(S_T2)}, {s(S_T2)}, {Y_OFF}")
    Yv = T + 4
    def yload():
        A(f"s_mov_b32 {s(S_T1)}, {s(S_T2)}")
        for j in range(8):
            A(f"buffer_load_dwordx4 {v(Yv+4*j,4)}, {v(T)}, {s(R_WS,4)}, {s(S_T1)} offen{LDF}")
            if j < 7: A(f"s_add_u32 {s(S_T1)}, {s(S_T1)}, {8*5120}")
    yload()
    A("s_waitcnt vmcnt(0)")
    stamp(12)
    spin_check(lambda: tagchk([Yv+4*j for j in range(8)], T+1), yload, o["ysleep"], count_slot=13)
    for step in (16, 8, 4):
        for k in range(0, step, 4):
            A(f"v_add_f32 {v(Yv+k)}, {v(Yv+k)}, {v(Yv+k+step)}")
            A(f"v_add_f32 {v(Yv+k+2)}, {v(Yv+k+2)}, {v(Yv+k+2+step)}")
    a0, a1 = Yv, Yv+2
    A.nop(2)
    A(f"v_permlane32_swap_b32 {v(a0)}, {v(a1)}")
    A.nop(2)
    A(f"v_add_f32 {v(a0)}, {v(a0)}, {v(a1)}")
    A(f"v_mov_b32 {v(a1)}, {v(a0)}")
    A.nop(2)
    A(f"v_permlane16_swap_b32 {v(a0)}, {v(a1)}")
    A.nop(2)
    A(f"v_add_f32 {v(a0)}, {v(a0)}, {v(a1)}")
    A.nop(2)
    A(f"v_add_f32_dpp {v(a0)}, {v(a0)}, {v(a0)} row_ror:8 row_mask:0xf bank_mask:0xf")
    A(f"v_add_f32 {v(a0)}, {v(a0)}, {v(V_CX)}")
    A(f"v_cvt_pk_bf16_f32 {v(a0)}, {v(a0)}, {v(a0)}")
    A("s_mov_b32 exec_lo, 0xff\ns_mov_b32 exec_hi, 0xff")
    A(f"buffer_store_short {v(a0)}, {v(V_F1OFF)}, {s(R_OUT,4)}, 0 offen")
    A(f"s_cmp_eq_u32 {s(S_ID)}, 0")
    A("s_cbranch_scc0 L_noep")
    A(f"v_mov_b32 {v(T+2)}, {s(S_TLO)}\nv_mov_b32 {v(T+3)}, {s(S_THI)}\nv_mov_b32 {v(T+1)}, {EP_OFF}")
    A("s_mov_b64 exec, 1")
    A(f"buffer_store_dwordx2 {v(T+2,2)}, {v(T+1)}, {s(R_WS,4)}, 0 offen{STF}")
    A.label("L_noep")
    if o["stamp"]:
        A("s_waitcnt vmcnt(0)")
        A("s_mov_b64 exec, -1")
        stamp_out()
    A.label("L_end")
    A("s_endpgm")
    A.label("L_kbody")
    for i in range(32):
        n = i % 16
        b = V_BUF + 4*i
        A("s_waitcnt vmcnt(31)")
        A(f"v_dot2_f32_bf16 {v(V_ACC+n)}, {v(b)}, {v(V_Q)}, 0")
        for k in range(1, 4):
            A(f"v_dot2_f32_bf16 {v(V_ACC+n)}, {v(b+k)}, {v(V_Q+k)}, {v(V_ACC+n)}")
        A(f"buffer_load_dwordx4 {v(b,4)}, {v(V_KOFF)}, {s(R_CUR,4)}, {s(S_SOFF)} offen{NTK}")
        A(f"s_add_u32 {s(S_SOFF)}, {s(S_SOFF)}, 4096")
        if n == 15:
            x = V_ACC
            A.nop(2)
            for t in range(8):
                A(f"v_add_f32_dpp {v(x+t)}, {v(x+t)}, {v(x+t)} row_ror:8 row_mask:0xf bank_mask:0x3")
                A(f"v_add_f32_dpp {v(x+t)}, {v(x+t+8)}, {v(x+t+8)} row_ror:8 row_mask:0xf bank_mask:0xc")
            for t in range(4):
                A(f"v_add_f32_dpp {v(x+t)}, {v(x+t)}, {v(x+t)} row_half_mirror row_mask:0xf bank_mask:0x5")
                A(f"v_add_f32_dpp {v(x+t)}, {v(x+t+4)}, {v(x+t+4)} row_half_mirror row_mask:0xf bank_mask:0xa")
            A.nop(2)
            for t in range(4):
                A(f"v_add_f32_dpp {v(x+t)}, {v(x+t)}, {v(x+t)} quad_perm:[2,3,0,1] row_mask:0xf bank_mask:0xf")
            A(f"v_cndmask_b32 {v(x)}, {v(x)}, {v(x+2)}, {s(S_M2,2)}")
            A(f"v_cndmask_b32 {v(x+1)}, {v(x+1)}, {v(x+3)}, {s(S_M2,2)}")
            A.nop(2)
            A(f"v_add_f32_dpp {v(x)}, {v(x)}, {v(x)} quad_perm:[1,0,3,2] row_mask:0xf bank_mask:0xf")
            A(f"v_add_f32_dpp {v(x+1)}, {v(x+1)}, {v(x+1)} quad_perm:[1,0,3,2] row_mask:0xf bank_mask:0xf")
            dst = V_PC0 if i == 15 else V_PC1
            A(f"v_cndmask_b32 {v(dst)}, {v(x)}, {v(x+1)}, {s(S_M1,2)}")
    A(f"s_setpc_b64 {s(S_RET,2)}")
    for lbl, refill in (("L_vbody", True), ("L_vdrain", False)):
        A.label(lbl)
        for i in range(32):
            n = i % 16
            b = V_BUF + 4*i
            P = V_PC0 if i < 16 else V_PC1
            for k in range(4):
                A(f"v_and_b32_dpp {v(V_A0+k)}, {v(P)}, {v(V_M+k)} row_newbcast:{n} row_mask:0xf bank_mask:0xf")
            A(f"s_waitcnt vmcnt({31 if refill else 31-i})")
            A.nop(1)
            A(f"v_mfma_f32_16x16x32_bf16 {v(V_O,4)}, {v(V_A0,4)}, {v(b,4)}, {v(V_O,4)}")
            if refill:
                A(f"buffer_load_dwordx4 {v(b,4)}, {v(V_KOFF)}, {s(R_CUR,4)}, {s(S_SOFF)} offen{NTK}")
                A(f"s_add_u32 {s(S_SOFF)}, {s(S_SOFF)}, 4096")
        A(f"s_setpc_b64 {s(S_RET,2)}")
    A.L.append(f""".section .rodata,"a"
.p2align 6
.amdhsa_kernel {NAME}
  .amdhsa_next_free_vgpr 512
  .amdhsa_next_free_sgpr {NSGPR}
  .amdhsa_accum_offset 256
  .amdhsa_group_segment_fixed_size 0
  .amdhsa_kernarg_size 96
  .amdhsa_user_sgpr_count 2
  .amdhsa_user_sgpr_kernarg_segment_ptr 1
  .amdhsa_system_sgpr_workgroup_id_x 1
  .amdhsa_float_denorm_mode_32 3
  .amdhsa_float_denorm_mode_16_64 3
.end_amdhsa_kernel""")
    return A.text()

def dump(A, regs):
    A("s_waitcnt vmcnt(0) lgkmcnt(0)")
    A(f"s_mov_b32 s60, s{P_WS}\ns_mov_b32 s61, s{P_WS+1}\ns_mov_b32 s62, 0x10000000\ns_mov_b32 s63, 0x20000")
    A(f"s_lshl_b32 s{S_T1}, s{S_ID}, 10")
    A(f"s_add_u32 s{S_T1}, s{S_T1}, {DBG_OFF}")
    A(f"v_lshlrev_b32 v79, 2, v0")
    for k, r in enumerate(regs):
        A(f"buffer_store_dword v{r}, v79, s[60:63], s{S_T1} offen")
        A(f"s_add_u32 s{S_T1}, s{S_T1}, {65536*4}")
    A("s_waitcnt vmcnt(0)")
    A("s_endpgm")

if __name__ == "__main__":
    import json
    opts = json.loads(sys.argv[2]) if len(sys.argv) > 2 else {}
    open(sys.argv[1], "w").write(gen(opts))
```

```python
import sys

NAME = "parallel_sum__gqa_block_cached__geglu_ffn__decode_kernel"

class Asm:
    def __init__(self):
        self.L = []
        self.fifo = 0
    def __call__(self, s):
        for line in s.split("\n"):
            t = line.strip()
            if not t: continue
            self.L.append(t if t.endswith(":") else "  " + t)
    def label(self, s): self.L.append(s + ":")
    def nop(self, n):
        while n > 0:
            k = min(n, 16)
            self.L.append(f"  s_nop {k-1}")
            n -= k
    def vm(self, s):
        self(s)
        self.fifo += 1
        return self.fifo - 1
    def wait_vm(self, idx, extra=""):
        n = min(self.fifo - 1 - idx, 63)
        self(f"s_waitcnt vmcnt({n}){extra}")
    def text(self): return "\n".join(self.L) + "\n"

def v(i, n=1): return f"v{i}" if n == 1 else f"v[{i}:{i+n-1}]"
def a(i, n=1): return f"a{i}" if n == 1 else f"a[{i}:{i+n-1}]"
def s(i, n=1): return f"s{i}" if n == 1 else f"s[{i}:{i+n-1}]"

QX_OFF  = 0
QX_SIZE = 32*4*8*1024
F_OFF   = QX_OFF + QX_SIZE
F_ROW   = 864*16
F_SIZE  = 8*4*F_ROW
ST_OFF  = F_OFF + F_SIZE
ST_SIZE = 128*128
Y_OFF   = ST_OFF + ST_SIZE
Y_SIZE  = 256*5120
EP_OFF  = Y_OFF + Y_SIZE
WS_SIZE = EP_OFF + 256
DBG_OFF = 4 << 20
assert WS_SIZE <= DBG_OFF

L_XN = 0
L_QP = 10240
L_FP = 18432
L_QG = 26624
L_OP = 28672
L_YP = 30720
LDS_SIZE = 51200

P_X, P_K, P_V, P_WQ, P_WO, P_BX, P_WG, P_WU, P_WD, P_OUT, P_DBG, P_WS = [4+2*i for i in range(12)]
R_K, R_V, R_CUR, R_WQ, R_WO, R_F1, R_WD, R_WS, R_X, R_OUT = [28+4*i for i in range(10)]
S_TLO, S_THI = 68, 69
S_GVAL = 70
S_W, S_H, S_HALF, S_B, S_BH, S_SOFF, S_T0, S_T1, S_T2, S_T3 = range(72, 82)
S_RET = 82
S_M2 = 84
S_M1 = 86
S_FVAL = 88
S_SPIN = 90
S_ID = 91
S_WOOFF = 92
S_C1 = 93
S_C2 = 94
S_T4 = 95
S_EX = 96
S_J = 3
NSGPR = 100
S_TR = 15

V_TID, V_LANE, V_C, V_SG, V_KOFF, V_WQOFF, V_WOOFF, V_F1OFF, V_FV0, V_CX, V_FAC, V_MW, V_LW, V_FV1, V_PC0, V_PC1 = range(16)
V_T = 16
V_O = 80
V_A0 = 84
V_A1 = 88
V_ML = 92
V_M = 96
V_Q = 100
V_SC = 104
V_ACC = 112
V_BUF = 128
D = 32

A_W = 0
A_F1 = 20
A_WD = 160
A_Y = 200
A_F = 220
A_Q = 236

SPIN_MAX = 100000
F32_INV640 = 0x3acccccd
F32_EPS = 0x3727c5ac
F32_SCALE = 0x3db504f3
F32_LOG2E = 0x3fb8aa3b
TAG_HI_INC = 0x61c88647

def xrow(A, op, x, tmp):
    A(f"v_mov_b32 {v(tmp)}, {v(x)}")
    A.nop(2)
    A(f"v_permlane16_swap_b32 {v(x)}, {v(tmp)}")
    A.nop(2)
    A(f"{op} {v(x)}, {v(x)}, {v(tmp)}")
    A(f"v_mov_b32 {v(tmp)}, {v(x)}")
    A.nop(2)
    A(f"v_permlane32_swap_b32 {v(x)}, {v(tmp)}")
    A.nop(2)
    A(f"{op} {v(x)}, {v(x)}, {v(tmp)}")

def allreduce(A, op, x, tmp):
    for r in (8, 4, 2, 1):
        A.nop(2)
        A(f"{op}_dpp {v(x)}, {v(x)}, {v(x)} row_ror:{r} row_mask:0xf bank_mask:0xf")
    xrow(A, op, x, tmp)

def allreduce2(A, op, x, y, tx, ty):
    A.nop(1)
    for r in (8, 4, 2, 1):
        A(f"{op}_dpp {v(x)}, {v(x)}, {v(x)} row_ror:{r} row_mask:0xf bank_mask:0xf")
        A(f"{op}_dpp {v(y)}, {v(y)}, {v(y)} row_ror:{r} row_mask:0xf bank_mask:0xf")
        A.nop(1)
    A(f"v_mov_b32 {v(tx)}, {v(x)}")
    A(f"v_mov_b32 {v(ty)}, {v(y)}")
    A.nop(1)
    A(f"v_permlane16_swap_b32 {v(x)}, {v(tx)}")
    A(f"v_permlane16_swap_b32 {v(y)}, {v(ty)}")
    A.nop(1)
    A(f"{op} {v(x)}, {v(x)}, {v(tx)}")
    A(f"{op} {v(y)}, {v(y)}, {v(ty)}")
    A(f"v_mov_b32 {v(tx)}, {v(x)}")
    A(f"v_mov_b32 {v(ty)}, {v(y)}")
    A.nop(1)
    A(f"v_permlane32_swap_b32 {v(x)}, {v(tx)}")
    A(f"v_permlane32_swap_b32 {v(y)}, {v(ty)}")
    A.nop(1)
    A(f"{op} {v(x)}, {v(x)}, {v(tx)}")
    A(f"{op} {v(y)}, {v(y)}, {v(ty)}")

def rbf(A, x, tmp):
    A(f"v_cvt_pk_bf16_f32 {v(tmp)}, {v(x)}, {v(x)}")
    A(f"v_and_b32 {v(x)}, 0xffff0000, {v(tmp)}")

def gen(opts=None):
    o = dict(nt_kv=" nt", nt_w=" nt", dump=None, stamp=False, stf=" sc1", ldf=" sc1", ysleep=2, gpos=16,
             pretouch=True, warm_tail=False, nowo=False, wo_first=False, thr=None, pad=0, strip=False)
    if opts: o.update(opts)
    NTK = o["nt_kv"]; NTW = o["nt_w"]; STF = o["stf"]; LDF = o["ldf"]
    A = Asm()
    T = V_T
    V_ST = T + 58
    nst = [0]
    def stamp(slot=None):
        if not o["stamp"]: return
        A("s_memrealtime s[98:99]")
        A("s_waitcnt lgkmcnt(0)")
        A(f"v_writelane_b32 {v(V_ST)}, s98, {nst[0] if slot is None else slot}")
        if slot is None: nst[0] += 1
    def trace():
        if not o.get("trace"): return
        A("s_memrealtime s[98:99]")
        A("s_waitcnt lgkmcnt(0)")
        A(f"s_mov_b32 m0, {s(S_TR)}")
        A("s_nop 0")
        A(f"v_writelane_b32 {v(T+56)}, s98, m0")
        A(f"s_add_u32 {s(S_TR)}, {s(S_TR)}, 1")
    def stamp_out():
        if not o["stamp"]: return
        if o.get("trace"):
            A(f"s_lshl_b32 {s(S_T1)}, {s(S_ID)}, 2")
            A(f"s_add_u32 {s(S_T1)}, {s(S_T1)}, {s(S_W)}")
            A(f"s_lshl_b32 {s(S_T1)}, {s(S_T1)}, 8")
            A(f"s_add_u32 {s(S_T1)}, {s(S_T1)}, {DBG_OFF + 65536}")
            A(f"s_mov_b32 s60, s{P_WS}\ns_mov_b32 s61, s{P_WS+1}\ns_mov_b32 s62, 0x10000000\ns_mov_b32 s63, 0x20000")
            A("s_mov_b64 exec, -1")
            A(f"v_lshlrev_b32 {v(T+57)}, 2, {v(V_LANE)}")
            A(f"buffer_store_dword {v(T+56)}, {v(T+57)}, s[60:63], {s(S_T1)} offen")
        stamp(10)
        A(f"s_lshl_b32 {s(S_T1)}, {s(S_ID)}, 2")
        A(f"s_add_u32 {s(S_T1)}, {s(S_T1)}, {s(S_W)}")
        A(f"s_lshl_b32 {s(S_T1)}, {s(S_T1)}, 6")
        A(f"s_add_u32 {s(S_T1)}, {s(S_T1)}, {DBG_OFF}")
        A(f"s_mov_b32 s60, s{P_WS}\ns_mov_b32 s61, s{P_WS+1}\ns_mov_b32 s62, 0x10000000\ns_mov_b32 s63, 0x20000")
        A("s_mov_b64 exec, 0xffff")
        A(f"v_lshlrev_b32 {v(T+57)}, 2, {v(V_LANE)}")
        A(f"buffer_store_dword {v(V_ST)}, {v(T+57)}, s[60:63], {s(S_T1)} offen")
    A.L.append(f"; @launch grid=(256,1,1) block=(256,1,1) lds={LDS_SIZE}")
    A.L.append('.amdgcn_target "amdgcn-amd-amdhsa--gfx950"')
    A.L.append(".text")
    A.L.append(f".globl {NAME}")
    A.L.append(".p2align 8")
    A.L.append(f".type {NAME},@function")
    A.label(NAME)
    A("s_cmp_ge_u32 s2, 256")
    A("s_cbranch_scc1 L_end")
    A("s_load_dwordx16 s[4:19], s[0:1], 0")
    A("s_load_dwordx8 s[20:27], s[0:1], 64")
    if o["stamp"]:
        A(f"v_mov_b32 {v(V_ST)}, 0")
        A("s_memrealtime s[98:99]")
    A(f"v_and_b32 {v(V_LANE)}, 63, v0")
    A(f"v_lshrrev_b32 {v(T)}, 6, v0")
    A(f"s_mov_b32 {s(S_ID)}, s2")
    A(f"v_readfirstlane_b32 {s(S_W)}, {v(T)}")
    A(f"s_and_b32 {s(S_H)}, s2, 7")
    A(f"s_lshl_b32 {s(S_H)}, {s(S_H)}, 2")
    A(f"s_bfe_u32 {s(S_HALF)}, s2, 0x20004")
    A(f"s_or_b32 {s(S_H)}, {s(S_H)}, {s(S_HALF)}")
    A(f"s_bfe_u32 {s(S_HALF)}, s2, 0x10003")
    A(f"s_lshr_b32 {s(S_B)}, s2, 6")
    A(f"s_lshl_b32 {s(S_J)}, {s(S_B)}, 1")
    A(f"s_or_b32 {s(S_J)}, {s(S_J)}, {s(S_HALF)}")
    A(f"s_lshl_b32 {s(S_T0)}, {s(S_B)}, 5")
    A(f"s_add_u32 {s(S_BH)}, {s(S_T0)}, {s(S_H)}")
    A(f"v_and_b32 {v(V_C)}, 15, {v(V_LANE)}")
    A(f"v_lshrrev_b32 {v(V_SG)}, 4, {v(V_LANE)}")
    A(f"v_lshlrev_b32 {v(T+1)}, 4, {v(V_LANE)}")
    A(f"v_lshlrev_b32 {v(T+2)}, 4, {v(V_C)}")
    A(f"s_lshl_b32 {s(S_T0)}, {s(S_BH)}, 20")
    A(f"s_lshl_b32 {s(S_T1)}, {s(S_HALF)}, 19")
    A(f"s_add_u32 {s(S_T0)}, {s(S_T0)}, {s(S_T1)}")
    A(f"s_lshl_b32 {s(S_T1)}, {s(S_W)}, 10")
    A(f"v_add_u32 {v(V_KOFF)}, {s(S_T1)}, {v(T+1)}")
    A(f"v_lshl_add_u32 {v(V_WQOFF)}, {v(V_SG)}, 13, {v(T+2)}")
    A(f"v_lshlrev_b32 {v(T+8)}, 2, {v(V_LANE)}")
    A(f"s_mul_i32 {s(S_T2)}, {s(S_J)}, 80")
    A(f"s_mul_i32 {s(S_T3)}, {s(S_W)}, 20")
    A(f"s_add_u32 {s(S_C1)}, {s(S_T2)}, {s(S_T3)}")
    A(f"s_lshl_b32 {s(S_T2)}, {s(S_C1)}, 13")
    A(f"s_lshl_b32 {s(S_T3)}, {s(S_H)}, 8")
    A(f"s_add_u32 {s(S_T2)}, {s(S_T2)}, {s(S_T3)}")
    A(f"s_mul_i32 {s(S_T1)}, {s(S_W)}, 1280")
    A("s_waitcnt lgkmcnt(0)")
    if o["stamp"]:
        A(f"v_writelane_b32 {v(V_ST)}, s98, 0"); nst[0] = 1
    A(f"s_mov_b32 {s(S_SPIN)}, {EP_OFF}")
    A(f"s_load_dwordx2 {s(S_TLO,2)}, {s(P_WS,2)}, {s(S_SPIN)}")
    def srd(r, p, size, add=None):
        if add is None:
            A(f"s_mov_b32 {s(r)}, {s(p)}")
            A(f"s_mov_b32 {s(r+1)}, {s(p+1)}")
        else:
            A(f"s_add_u32 {s(r)}, {s(p)}, {s(add)}")
            A(f"s_addc_u32 {s(r+1)}, {s(p+1)}, 0")
        A(f"s_mov_b32 {s(r+2)}, {size}")
        A(f"s_mov_b32 {s(r+3)}, 0x20000")
    srd(R_X, P_X, 5120)
    VX = T + 10
    xl = []
    for k in range(5):
        xl.append(A.vm(f"buffer_load_dword {v(VX+k)}, {v(T+8)}, {s(R_X,4)}, {s(S_T1)} offen offset:{256*k}"))
    srd(R_WQ, P_WQ, 640*8192)
    wq_idx = []
    for t in range(5):
        wq_idx.append(A.vm(f"buffer_load_dwordx4 {a(A_W+4*t,4)}, {v(V_WQOFF)}, {s(R_WQ,4)}, {s(S_T2)} offen{NTW}"))
        if t < 4: A(f"s_add_u32 {s(S_T2)}, {s(S_T2)}, 32768")
    srd(R_CUR, P_K, 1 << 19, add=S_T0)
    A(f"s_mov_b32 {s(S_SOFF)}, 0")
    k_idx = []
    def k_load(n=1):
        for _ in range(n):
            if len(k_idx) >= D: return
            i = len(k_idx)
            k_idx.append(A.vm(f"buffer_load_dwordx4 {v(V_BUF+4*i,4)}, {v(V_KOFF)}, {s(R_CUR,4)}, {s(S_SOFF)} offen{NTK}"))
            A(f"s_add_u32 {s(S_SOFF)}, {s(S_SOFF)}, 4096")
    k_load(2)
    srd(R_V, P_V, 1 << 19, add=S_T0)
    srd(R_WS, P_WS, WS_SIZE)
    srd(R_WO, P_WO, 4096*1280)
    srd(R_WD, P_WD, 1728*1280)
    srd(R_OUT, P_OUT, 5120)

    A(f"s_bitcmp1_b32 {s(S_ID)}, 2")
    A(f"s_cselect_b32 {s(R_F1)}, {s(P_WU)}, {s(P_WG)}")
    A(f"s_cselect_b32 {s(R_F1+1)}, {s(P_WU+1)}, {s(P_WG+1)}")
    A(f"s_cmp_lt_u32 {s(S_ID)}, 216")
    A(f"s_cselect_b32 {s(R_F1+2)}, {640*3456}, 0")
    A(f"s_mov_b32 {s(R_F1+3)}, 0x20000")
    A(f"v_mul_u32_u24 {v(V_WOOFF)}, 1280, {v(V_SG)}")
    A(f"v_add_u32 {v(V_WOOFF)}, {v(V_WOOFF)}, {v(T+2)}")
    t0, t1, t2 = T+16, T+17, T+18
    A(f"v_bfe_u32 {v(t0)}, {v(V_LANE)}, 3, 1")
    A(f"v_lshl_add_u32 {v(t0)}, {v(V_SG)}, 1, {v(t0)}")
    A(f"v_mul_u32_u24 {v(V_F1OFF)}, 3456, {v(t0)}")
    A(f"v_and_b32 {v(t1)}, 7, {v(V_LANE)}")
    A(f"v_lshl_add_u32 {v(V_F1OFF)}, {v(t1)}, 4, {v(V_F1OFF)}")
    A(f"s_and_b32 {s(S_T1)}, {s(S_ID)}, 3")
    A(f"s_mul_i32 {s(S_T1)}, {s(S_T1)}, 160")
    A(f"s_mul_i32 {s(S_T3)}, {s(S_W)}, 40")
    A(f"s_add_u32 {s(S_T4)}, {s(S_T1)}, {s(S_T3)}")
    A(f"s_mul_i32 {s(S_T1)}, {s(S_T4)}, 3456")
    A(f"s_lshr_b32 {s(S_C2)}, {s(S_ID)}, 3")
    A(f"s_lshl_b32 {s(S_T3)}, {s(S_C2)}, 7")
    A(f"s_add_u32 {s(S_T1)}, {s(S_T1)}, {s(S_T3)}")
    f1_idx = []
    def f1_load():
        tau = len(f1_idx)
        f1_idx.append(A.vm(f"buffer_load_dwordx4 {a(A_F1+4*tau,4)}, {v(V_F1OFF)}, {s(R_F1,4)}, {s(S_T0)} offen{NTW}"))
        if tau < 4: A(f"s_add_u32 {s(S_T0)}, {s(S_T0)}, {8*3456}")
    A(f"s_mov_b32 {s(S_T0)}, {s(S_T1)}")
    A(f"v_and_b32 {v(t0)}, 1, {v(V_LANE)}")
    A(f"v_cmp_eq_u32 vcc, 1, {v(t0)}")
    A(f"v_mov_b32 {v(t1)}, 0xffff")
    A(f"v_mov_b32 {v(t2)}, 0xffff0000")
    A(f"v_cndmask_b32 {v(t1)}, {v(t1)}, {v(t2)}, vcc")
    A(f"v_bfe_u32 {v(t0)}, {v(V_LANE)}, 1, 2")
    for t in range(4):
        A(f"v_cmp_eq_u32 vcc, {t}, {v(t0)}")
        A.nop(2)
        A(f"v_cndmask_b32 {v(V_M+t)}, 0, {v(t1)}, vcc")
    A(f"s_mov_b32 {s(S_M2)}, 0xcccccccc\ns_mov_b32 {s(S_M2+1)}, 0xcccccccc")
    A(f"s_mov_b32 {s(S_M1)}, 0xaaaaaaaa\ns_mov_b32 {s(S_M1+1)}, 0xaaaaaaaa")
    A(f"s_mov_b32 {s(S_FVAL)}, 0x00ff00ff\ns_mov_b32 {s(S_FVAL+1)}, 0xff00ff00")
    XA, XQ, XF = T+50, T+51, T+52
    A(f"v_and_b32 {v(XA)}, 1, {v(V_LANE)}")
    A(f"v_mul_u32_u24 {v(XA)}, 320, {v(XA)}")
    A(f"v_lshrrev_b32 {v(t0)}, 1, {v(V_LANE)}")
    A(f"v_add_lshl_u32 {v(XA)}, {v(XA)}, {v(t0)}, 2")
    A(f"s_mul_i32 {s(S_T1)}, {s(S_W)}, 2560")
    A(f"v_add_u32 {v(XA)}, {s(S_T1)}, {v(XA)}")
    A(f"v_bfe_u32 {v(XQ)}, {v(V_LANE)}, 3, 1")
    A(f"v_mul_u32_u24 {v(XQ)}, 2560, {v(XQ)}")
    A(f"v_mul_u32_u24 {v(t0)}, 640, {v(V_SG)}")
    A(f"v_add3_u32 {v(XQ)}, {v(XQ)}, {v(t0)}, {s(S_C1)}")
    A(f"v_bfe_u32 {v(t0)}, {v(V_LANE)}, 3, 1")
    A(f"v_lshl_add_u32 {v(t0)}, {v(V_SG)}, 1, {v(t0)}")
    A(f"v_and_b32 {v(t0)}, 3, {v(t0)}")
    A(f"v_mul_u32_u24 {v(XF)}, 160, {v(t0)}")
    A(f"v_lshrrev_b32 {v(t0)}, 1, {v(V_SG)}")
    A(f"v_add_u32 {v(XF)}, {v(XF)}, {v(t0)}")
    A(f"v_lshlrev_b32 {v(XF)}, 2, {v(XF)}")
    A(f"v_add_u32 {v(XF)}, {s(S_T4)}, {v(XF)}")
    A.wait_vm(xl[-1])
    F = T + 20
    DV = T + 32
    S1, S2, TM1, TM2, MEAN, MB, RS, SD = T+44, T+45, T+46, T+47, T+48, T+49, T+53, T+54
    for k in range(5):
        A(f"v_lshlrev_b32 {v(F+2*k)}, 16, {v(VX+k)}")
        A(f"v_and_b32 {v(F+2*k+1)}, 0xffff0000, {v(VX+k)}")
    A(f"v_readfirstlane_b32 {s(S_T1)}, {v(F)}")
    k_load(2)
    for k in range(10): A(f"v_subrev_f32 {v(DV+k)}, {s(S_T1)}, {v(F+k)}")
    A(f"v_add_f32 {v(S1)}, {v(DV)}, {v(DV+1)}")
    A(f"v_mul_f32 {v(S2)}, {v(DV)}, {v(DV)}")
    A(f"v_fmac_f32 {v(S2)}, {v(DV+1)}, {v(DV+1)}")
    for k in range(2, 10):
        A(f"v_add_f32 {v(S1)}, {v(S1)}, {v(DV+k)}")
        A(f"v_fmac_f32 {v(S2)}, {v(DV+k)}, {v(DV+k)}")
    f1_load(); f1_load()
    allreduce2(A, "v_add_f32", S1, S2, TM1, TM2)
    f1_load(); f1_load(); f1_load()
    A(f"v_mul_f32 {v(S1)}, {F32_INV640:#x}, {v(S1)}")
    A(f"v_mul_f32 {v(S2)}, {F32_INV640:#x}, {v(S2)}")
    A(f"v_add_f32 {v(MB)}, {s(S_T1)}, {v(S1)}")
    A(f"v_fma_f32 {v(S2)}, -{v(S1)}, {v(S1)}, {v(S2)}")
    rbf(A, MB, TM1)
    rbf(A, S2, TM2)
    A(f"v_add_f32 {v(S2)}, {F32_EPS:#x}, {v(S2)}")
    rbf(A, S2, TM2)
    A(f"v_sqrt_f32 {v(SD)}, {v(S2)}")
    A.nop(1)
    rbf(A, SD, TM2)
    A(f"v_rcp_f32 {v(RS)}, {v(SD)}")
    k_load(2)
    for k in range(10): A(f"v_sub_f32 {v(DV+k)}, {v(F+k)}, {v(MB)}")
    for k in range(5): A(f"v_cvt_pk_bf16_f32 {v(VX+k)}, {v(DV+2*k)}, {v(DV+2*k+1)}")
    for k in range(5):
        A(f"v_lshlrev_b32 {v(DV+2*k)}, 16, {v(VX+k)}")
        A(f"v_and_b32 {v(DV+2*k+1)}, 0xffff0000, {v(VX+k)}")
    for k in range(10): A(f"v_mul_f32 {v(DV+k)}, {v(DV+k)}, {v(RS)}")
    for k in range(10): A(f"v_cvt_pk_bf16_f32 {v(DV+k)}, {v(DV+k)}, {v(DV+k)}")
    for k in range(5):
        A(f"ds_write_b32 {v(XA)}, {v(DV+2*k)} offset:{L_XN + 128*k}")
        A(f"ds_write_b32 {v(XA)}, {v(DV+2*k+1)} offset:{L_XN + 128*k + 640}")
    k_load(2)
    A("s_waitcnt lgkmcnt(0)")
    A(f"s_add_u32 {s(S_TLO)}, {s(S_TLO)}, 1")
    A(f"s_add_u32 {s(S_THI)}, {s(S_THI)}, {TAG_HI_INC:#x}")
    A("s_barrier")
    stamp()
    XV = T
    for beta in range(2):
        for tau in range(5):
            A(f"ds_read_b32 {v(XV+5*beta+tau)}, {v(XQ)} offset:{L_XN + beta*5120 + 4*tau}")
    FX = T + 10
    for tau in range(5):
        for b in range(4):
            A(f"ds_read_b32 {v(FX+4*tau+b)}, {v(XF)} offset:{L_XN + b*2560 + tau*8}")
    QA = T + 55
    A(f"v_lshrrev_b32 {v(QA)}, 1, {v(V_SG)}")
    A(f"s_lshl_b32 {s(S_T1)}, {s(S_W)}, 2")
    A(f"v_add_u32 {v(QA)}, {s(S_T1)}, {v(QA)}")
    A(f"v_lshlrev_b32 {v(QA)}, 7, {v(QA)}")
    A(f"v_lshl_add_u32 {v(QA)}, {v(V_C)}, 3, {v(QA)}")
    A(f"v_and_b32 {v(T+56)}, 1, {v(V_SG)}")
    A(f"v_lshl_add_u32 {v(QA)}, {v(T+56)}, 2, {v(QA)}")
    A(f"v_lshlrev_b32 {v(QA)}, 2, {v(QA)}")
    def mkA(dst, src, masks=V_M):
        for k in range(4): A(f"v_and_b32 {v(dst+k)}, {v(src)}, {v(masks+k)}")
    A.wait_vm(wq_idx[-1], " lgkmcnt(0)")
    seq = [(beta, tau) for tau in range(5) for beta in range(2)]
    mkA(V_A0, XV + 5*seq[0][0] + seq[0][1])
    for n, (beta, tau) in enumerate(seq):
        cur, nxt = (V_A0, V_A1) if n % 2 == 0 else (V_A1, V_A0)
        if n + 1 < len(seq): mkA(nxt, XV + 5*seq[n+1][0] + seq[n+1][1])
        else: A.nop(2)
        c = "0" if tau == 0 else a(A_Q+4*beta, 4)
        A(f"v_mfma_f32_16x16x32_bf16 {a(A_Q+4*beta,4)}, {v(cur,4)}, {a(A_W+4*tau,4)}, {c}")
    k_load(2)
    A.nop(4)
    for beta in range(2):
        A(f"ds_write_b128 {v(QA)}, {a(A_Q+4*beta,4)} offset:{L_QP + beta*1024}")
    QR = T + 56
    A(f"v_lshlrev_b32 {v(QR)}, 3, {v(V_LANE)}")
    A(f"s_lshl_b32 {s(S_T1)}, {s(S_W)}, 9")
    A(f"v_add_u32 {v(QR)}, {s(S_T1)}, {v(QR)}")
    A("s_waitcnt lgkmcnt(0)")
    A("s_barrier")
    for w in range(4):
        A(f"ds_read_b64 {v(T+32+2*w,2)}, {v(QR)} offset:{L_QP + w*2048}")
    A(f"s_lshl_b32 {s(S_T1)}, {s(S_H)}, 2")
    A(f"s_add_u32 {s(S_T1)}, {s(S_T1)}, {s(S_W)}")
    A(f"s_lshl_b32 {s(S_T1)}, {s(S_T1)}, 3")
    A(f"s_add_u32 {s(S_T1)}, {s(S_T1)}, {s(S_J)}")
    A(f"s_lshl_b32 {s(S_T1)}, {s(S_T1)}, 10")
    A(f"s_add_u32 {s(S_T1)}, {s(S_T1)}, {QX_OFF}")
    A(f"v_lshlrev_b32 {v(T+48)}, 4, {v(V_LANE)}")
    A(f"v_mov_b32 {v(T+41)}, {s(S_TLO)}")
    A(f"v_mov_b32 {v(T+43)}, {s(S_THI)}")
    A("s_waitcnt lgkmcnt(0)")
    A(f"v_add_f32 {v(T+32)}, {v(T+32)}, {v(T+34)}")
    A(f"v_add_f32 {v(T+33)}, {v(T+33)}, {v(T+35)}")
    A(f"v_add_f32 {v(T+36)}, {v(T+36)}, {v(T+38)}")
    A(f"v_add_f32 {v(T+37)}, {v(T+37)}, {v(T+39)}")
    A(f"v_add_f32 {v(T+40)}, {v(T+32)}, {v(T+36)}")
    A(f"v_add_f32 {v(T+42)}, {v(T+33)}, {v(T+37)}")
    A.vm(f"buffer_store_dwordx4 {v(T+40,4)}, {v(T+48)}, {s(R_WS,4)}, {s(S_T1)} offen{STF}")
    stamp()
    A.wait_vm(f1_idx[-1])
    seq = [(tau, b) for tau in range(5) for b in range(4)]
    mkA(V_A0, FX)
    for n, (tau, b) in enumerate(seq):
        cur, nxt = (V_A0, V_A1) if n % 2 == 0 else (V_A1, V_A0)
        if n + 1 < len(seq): mkA(nxt, FX + n + 1)
        else: A.nop(2)
        c = "0" if tau == 0 else a(A_F+4*b, 4)
        A(f"v_mfma_f32_16x16x32_bf16 {a(A_F+4*b,4)}, {v(cur,4)}, {a(A_F1+4*tau,4)}, {c}")
        if n % 5 == 4: k_load(1)
    FA = T + 57
    A(f"v_bfe_u32 {v(FA)}, {v(V_LANE)}, 3, 1")
    A(f"v_lshlrev_b32 {v(FA)}, 6, {v(FA)}")
    A(f"v_and_b32 {v(T+56)}, 7, {v(V_LANE)}")
    A(f"v_lshl_add_u32 {v(FA)}, {v(T+56)}, 3, {v(FA)}")
    A(f"v_and_b32 {v(T+56)}, 1, {v(V_SG)}")
    A(f"v_lshl_add_u32 {v(FA)}, {v(T+56)}, 2, {v(FA)}")
    A(f"s_lshl_b32 {s(S_T1)}, {s(S_W)}, 9")
    A(f"v_add_lshl_u32 {v(FA)}, {v(FA)}, {s(S_T1)}, 2")
    A.nop(4)
    A(f"s_mov_b64 exec, {s(S_FVAL,2)}")
    for b in range(4):
        A(f"ds_write_b128 {v(FA)}, {a(A_F+4*b,4)} offset:{L_FP + b*512}")
    A("s_mov_b64 exec, -1")
    while len(k_idx) < o["gpos"]: k_load(1)
    G = T + 44 - 44 + 0
    G = T
    A(f"s_lshl_b32 {s(S_T1)}, {s(S_H)}, 2")
    A(f"s_add_u32 {s(S_T1)}, {s(S_T1)}, {s(S_B)}")
    A(f"s_lshl_b32 {s(S_T1)}, {s(S_T1)}, 3")
    A(f"s_lshl_b32 {s(S_T2)}, {s(S_W)}, 1")
    A(f"s_add_u32 {s(S_T1)}, {s(S_T1)}, {s(S_T2)}")
    A(f"s_lshl_b32 {s(S_T1)}, {s(S_T1)}, 10")
    A(f"s_add_u32 {s(S_T2)}, {s(S_T1)}, {QX_OFF}")
    gq = []
    def qgather():
        gq.append(A.vm(f"buffer_load_dwordx4 {v(G,4)}, {v(T+48)}, {s(R_WS,4)}, {s(S_T2)} offen{LDF}"))
        gq.append(A.vm(f"buffer_load_dwordx4 {v(G+4,4)}, {v(T+48)}, {s(R_WS,4)}, {s(S_T2)} offen offset:1024{LDF}"))
    qgather()
    k_load(D)
    spin_id = [0]
    def tagchk(regs, acc, first=True):
        for n, r in enumerate(regs):
            A(f"v_xor_b32 {v(r+1)}, {s(S_TLO)}, {v(r+1)}")
            A(f"v_xor_b32 {v(r+3)}, {s(S_THI)}, {v(r+3)}")
            if n == 0 and first: A(f"v_or_b32 {v(acc)}, {v(r+1)}, {v(r+3)}")
            else: A(f"v_or3_b32 {v(acc)}, {v(acc)}, {v(r+1)}, {v(r+3)}")
        A(f"v_cmp_ne_u32 vcc, 0, {v(acc)}")
    def spin_check(check, reload_, slp=2, count_slot=None):
        i = spin_id[0]; spin_id[0] += 1
        A(f"s_mov_b32 {s(S_SPIN)}, 0")
        A.label(f"L_sp{i}")
        check()
        A.nop(5)
        A(f"s_cbranch_vccz L_spd{i}")
        A(f"s_add_u32 {s(S_SPIN)}, {s(S_SPIN)}, 1")
        A(f"s_cmp_ge_u32 {s(S_SPIN)}, {SPIN_MAX}")
        A(f"s_cbranch_scc1 L_spd{i}")
        A(f"s_sleep {slp}")
        f = A.fifo
        reload_()
        A.fifo = f
        A("s_waitcnt vmcnt(0)")
        A(f"s_branch L_sp{i}")
        A.label(f"L_spd{i}")
        if count_slot is not None and o["stamp"]:
            A(f"v_writelane_b32 {v(V_ST)}, {s(S_SPIN)}, {count_slot}")
    A.wait_vm(gq[1])
    spin_check(lambda: tagchk([G, G+4], T+8), lambda: qgather(), count_slot=14)
    A(f"v_add_f32 {v(T+10)}, {v(G)}, {v(G+4)}")
    A(f"v_add_f32 {v(T+11)}, {v(G+2)}, {v(G+6)}")
    A(f"v_lshlrev_b32 {v(T+12)}, 3, {v(V_LANE)}")
    A(f"s_lshl_b32 {s(S_T1)}, {s(S_W)}, 9")
    A(f"v_add_u32 {v(T+12)}, {s(S_T1)}, {v(T+12)}")
    A(f"ds_write_b64 {v(T+12)}, {v(T+10,2)} offset:{L_QG}")
    QR = T + 60
    A(f"v_lshlrev_b32 {v(QR)}, 5, {v(V_C)}")
    FRD = T + 61
    A(f"v_and_b32 {v(FRD)}, 31, {v(V_LANE)}")
    A(f"v_lshlrev_b32 {v(FRD)}, 3, {v(FRD)}")
    A(f"v_add_u32 {v(FRD)}, {s(S_T1)}, {v(FRD)}")
    A("s_waitcnt lgkmcnt(0)")
    A("s_barrier")
    for w in range(4):
        A(f"ds_read_b128 {v(T+8*w,4)}, {v(QR)} offset:{L_QG + w*512}")
        A(f"ds_read_b128 {v(T+8*w+4,4)}, {v(QR)} offset:{L_QG + w*512 + 16}")
    for w in range(4):
        for rp in range(2):
            A(f"ds_read_b64 {v(T+32+4*w+2*rp,2)}, {v(FRD)} offset:{L_FP + w*2048 + rp*256}")
    A(f"s_and_b32 {s(S_T1)}, {s(S_ID)}, 3")
    A(f"s_lshl_b32 {s(S_T1)}, {s(S_T1)}, 1")
    A(f"s_bfe_u32 {s(S_T3)}, {s(S_ID)}, 0x10002")
    A(f"s_add_u32 {s(S_T1)}, {s(S_T1)}, {s(S_T3)}")
    A(f"s_lshl_b32 {s(S_T1)}, {s(S_T1)}, 2")
    A(f"s_add_u32 {s(S_T1)}, {s(S_T1)}, {s(S_W)}")
    A(f"s_mul_i32 {s(S_T1)}, {s(S_T1)}, {F_ROW}")
    A(f"s_lshl_b32 {s(S_T3)}, {s(S_C2)}, 9")
    A(f"s_add_u32 {s(S_T1)}, {s(S_T1)}, {s(S_T3)}")
    A(f"s_add_u32 {s(S_T1)}, {s(S_T1)}, {F_OFF}")
    A("s_waitcnt lgkmcnt(8)")
    for e in range(8):
        A(f"v_add_f32 {v(T+e)}, {v(T+e)}, {v(T+8+e)}")
        A(f"v_add_f32 {v(T+16+e)}, {v(T+16+e)}, {v(T+24+e)}")
    for e in range(8): A(f"v_add_f32 {v(T+e)}, {v(T+e)}, {v(T+16+e)}")
    for k in range(4): A(f"v_cvt_pk_bf16_f32 {v(V_Q+k)}, {v(T+2*k)}, {v(T+2*k+1)}")
    A("s_waitcnt lgkmcnt(0)")
    for e in range(2):
        A(f"v_add_f32 {v(T+32+e)}, {v(T+32+e)}, {v(T+34+e)}")
        A(f"v_add_f32 {v(T+36+e)}, {v(T+36+e)}, {v(T+38+e)}")
        A(f"v_add_f32 {v(T+40+e)}, {v(T+40+e)}, {v(T+42+e)}")
        A(f"v_add_f32 {v(T+44+e)}, {v(T+44+e)}, {v(T+46+e)}")
        A(f"v_add_f32 {v(T+32+e)}, {v(T+32+e)}, {v(T+36+e)}")
        A(f"v_add_f32 {v(T+40+e)}, {v(T+40+e)}, {v(T+44+e)}")
    A(f"v_add_f32 {v(T+52)}, {v(T+32)}, {v(T+40)}")
    A(f"v_add_f32 {v(T+54)}, {v(T+33)}, {v(T+41)}")
    A(f"v_mov_b32 {v(T+53)}, {s(S_TLO)}")
    A(f"v_mov_b32 {v(T+55)}, {s(S_THI)}")
    A(f"s_cmp_lt_u32 {s(S_ID)}, 216")
    A("s_cbranch_scc0 L_nofpub")
    A("s_mov_b32 exec_hi, 0")
    A(f"buffer_store_dwordx4 {v(T+52,4)}, {v(T+48)}, {s(R_WS,4)}, {s(S_T1)} offen{STF}")
    A("s_mov_b32 exec_hi, -1")
    A.label("L_nofpub")
    if o["dump"] == "q":
        dump(A, [V_Q, V_Q+1, V_Q+2, V_Q+3, T+52, T+54])
    def wo_loads(tau0):
        if o["nowo"]: return
        for tau in (tau0, tau0+1):
            for u in range(5):
                A.vm(f"buffer_load_dwordx4 {a(A_W+4*(tau*5+u),4)}, {v(V_WOOFF)}, {s(R_WO,4)}, {s(S_WOOFF)} offen offset:{256*u}{NTW}")
            A(f"s_add_u32 {s(S_WOOFF)}, {s(S_WOOFF)}, {4*1280}")
    A(f"s_lshl_b32 {s(S_T1)}, {s(S_H)}, 7")
    A(f"s_lshl_b32 {s(S_T3)}, {s(S_W)}, 5")
    A(f"s_add_u32 {s(S_T1)}, {s(S_T1)}, {s(S_T3)}")
    A(f"s_mul_i32 {s(S_WOOFF)}, {s(S_T1)}, 1280")
    def call(lbl):
        A(f"s_call_b64 {s(S_RET,2)}, {lbl}")
    if o.get("trace"):
        A(f"s_mov_b32 {s(S_TR)}, 0")
        A(f"v_mov_b32 {v(T+56)}, 0")
    A(f"s_mov_b32 {s(S_T4)}, {F32_SCALE:#x}")
    def savesc(k):
        x0, x1 = V_SC+2*k, V_SC+2*k+1
        A(f"v_cvt_pk_bf16_f32 {v(T)}, {v(V_PC0)}, {v(V_PC1)}")
        A(f"v_lshlrev_b32 {v(x0)}, 16, {v(T)}")
        A(f"v_and_b32 {v(x1)}, 0xffff0000, {v(T)}")
        A(f"v_mul_f32 {v(x0)}, {s(S_T4)}, {v(x0)}")
        A(f"v_mul_f32 {v(x1)}, {s(S_T4)}, {v(x1)}")
        A(f"v_cvt_pk_bf16_f32 {v(T)}, {v(x0)}, {v(x1)}")
        A(f"v_lshlrev_b32 {v(x0)}, 16, {v(T)}")
        A(f"v_and_b32 {v(x1)}, 0xffff0000, {v(T)}")
        if k == 0: A(f"v_max_f32 {v(V_MW)}, {v(x0)}, {v(x1)}")
        else: A(f"v_max3_f32 {v(V_MW)}, {v(V_MW)}, {v(x0)}, {v(x1)}")
    stamp()
    call("L_kbody"); savesc(0)
    stamp()
    wo_loads(0)
    call("L_kbody"); savesc(1); wo_loads(2)
    call("L_kbody"); savesc(2); wo_loads(4)
    for i in range(4): A(f"s_mov_b32 {s(R_CUR+i)}, {s(R_V+i)}")
    A(f"s_mov_b32 {s(S_SOFF)}, 0")
    call("L_kbody"); savesc(3)
    stamp()
    allreduce(A, "v_max_f32", V_MW, T+8)
    for k in range(8): A(f"v_sub_f32 {v(V_SC+k)}, {v(V_SC+k)}, {v(V_MW)}")
    for k in range(8): A(f"v_mul_f32 {v(V_SC+k)}, {F32_LOG2E:#x}, {v(V_SC+k)}")
    for k in range(8): A(f"v_exp_f32 {v(V_SC+k)}, {v(V_SC+k)}")
    for i in range(4): A(f"v_mov_b32 {v(V_O+i)}, 0")
    A(f"v_add_f32 {v(V_LW)}, {v(V_SC)}, {v(V_SC+1)}")
    for k in range(2, 8): A(f"v_add_f32 {v(V_LW)}, {v(V_LW)}, {v(V_SC+k)}")
    for k in range(8): A(f"v_cvt_pk_bf16_f32 {v(V_SC+k)}, {v(V_SC+k)}, {v(V_SC+k)}")
    def setpc_(k):
        A(f"v_mov_b32 {v(V_PC0)}, {v(V_SC+2*k)}\nv_mov_b32 {v(V_PC1)}, {v(V_SC+2*k+1)}")
    setpc_(0)
    wo_loads(6)
    call("L_vbody"); setpc_(1)
    allreduce(A, "v_add_f32", V_LW, T+8)
    A(f"s_lshl_b32 {s(S_T1)}, {s(S_BH)}, 7")
    A(f"s_lshl_b32 {s(S_T3)}, {s(S_HALF)}, 2")
    A(f"s_add_u32 {s(S_T3)}, {s(S_T3)}, {s(S_W)}")
    A(f"s_lshl_b32 {s(S_T3)}, {s(S_T3)}, 4")
    A(f"s_add_u32 {s(S_T1)}, {s(S_T1)}, {s(S_T3)}")
    A(f"s_add_u32 {s(S_T1)}, {s(S_T1)}, {ST_OFF}")
    A(f"v_mov_b32 {v(T)}, {v(V_MW)}\nv_mov_b32 {v(T+1)}, {s(S_TLO)}\nv_mov_b32 {v(T+2)}, {v(V_LW)}\nv_mov_b32 {v(T+3)}, {s(S_THI)}\nv_mov_b32 {v(T+4)}, 0")
    A("s_mov_b64 exec, 1")
    A(f"buffer_store_dwordx4 {v(T,4)}, {v(T+4)}, {s(R_WS,4)}, {s(S_T1)} offen{STF}")
    A("s_mov_b64 exec, -1")
    A(f"s_lshl_b32 {s(S_T1)}, {s(S_H)}, 1")
    A(f"s_add_u32 {s(S_T1)}, {s(S_T1)}, {s(S_HALF)}")
    A(f"s_mul_i32 {s(S_T4)}, {s(S_T1)}, 27")
    A(f"s_lshl_b32 {s(S_T3)}, {s(S_W)}, 2")
    A(f"s_add_u32 {s(S_T1)}, {s(S_T4)}, {s(S_T3)}")
    A(f"s_mul_i32 {s(S_T2)}, {s(S_T1)}, 1280")
    for cp in range(2):
        for u in range(5):
            A(f"buffer_load_dwordx4 {a(A_WD+4*(cp*5+u),4)}, {v(V_WOOFF)}, {s(R_WD,4)}, {s(S_T2)} offen offset:{256*u}{NTW}")
        if cp == 0: A(f"s_add_u32 {s(S_T2)}, {s(S_T2)}, {16*1280}")
    GV = T + 60
    GP = T + 62
    G = T + 8
    GS = T + 40
    SV = T + 61
    A(f"v_lshl_add_u32 {v(GV)}, {v(V_C)}, 4, {v(V_SG)}")
    A(f"v_add_u32 {v(GV)}, {s(S_T3)}, {v(GV)}")
    A(f"v_cmp_gt_u32 {s(S_GVAL,2)}, 27, {v(GV)}")
    A(f"v_add_u32 {v(GV)}, {s(S_T4)}, {v(GV)}")
    A(f"v_and_b32 {v(GP)}, 1, {v(GV)}")
    A(f"v_lshrrev_b32 {v(GV)}, 1, {v(GV)}")
    A(f"v_lshlrev_b32 {v(GV)}, 4, {v(GV)}")
    A(f"s_mul_i32 {s(S_T1)}, {s(S_B)}, {F_ROW}")
    A(f"v_add_u32 {v(GV)}, {s(S_T1)}, {v(GV)}")
    A(f"v_mov_b32 {v(T)}, 0x7ffffff0")
    A(f"v_cndmask_b32 {v(GV)}, {v(T)}, {v(GV)}, {s(S_GVAL,2)}")
    def gather_f():
        for k in range(8):
            A(f"s_mov_b32 {s(S_T1)}, {F_OFF + k*4*F_ROW}")
            A(f"buffer_load_dwordx4 {v(G+4*k,4)}, {v(GV)}, {s(R_WS,4)}, {s(S_T1)} offen{LDF}")
    def gather_s():
        A(f"s_lshl_b32 {s(S_T1)}, {s(S_BH)}, 7")
        A(f"s_add_u32 {s(S_T1)}, {s(S_T1)}, {ST_OFF}")
        A(f"buffer_load_dwordx4 {v(GS,4)}, {v(SV)}, {s(R_WS,4)}, {s(S_T1)} offen{LDF}")
    gather_f()
    A(f"s_mul_i32 {s(S_T1)}, {s(S_ID)}, 205")
    A(f"s_lshr_b32 {s(S_C1)}, {s(S_T1)}, 13")
    A(f"s_mul_i32 {s(S_T1)}, {s(S_C1)}, 40")
    A(f"s_sub_u32 {s(S_C2)}, {s(S_ID)}, {s(S_T1)}")
    A(f"v_and_b32 {v(T)}, 7, {v(V_LANE)}")
    A(f"v_lshrrev_b32 {v(T+1)}, 5, {v(V_LANE)}")
    A(f"v_lshl_add_u32 {v(T)}, {v(T)}, 1, {v(T+1)}")
    A(f"s_lshl_b32 {s(S_T1)}, {s(S_C2)}, 4")
    A(f"s_mul_i32 {s(S_T3)}, {s(S_C1)}, 640")
    A(f"s_add_u32 {s(S_T1)}, {s(S_T1)}, {s(S_T3)}")
    A(f"v_add_lshl_u32 {v(V_F1OFF)}, {v(T)}, {s(S_T1)}, 1")
    A(f"buffer_load_ushort {v(V_CX)}, {v(V_F1OFF)}, {s(R_X,4)}, 0 offen")
    call("L_vbody"); setpc_(2)
    stamp()
    A(f"v_and_b32 {v(SV)}, 7, {v(V_LANE)}")
    A(f"v_lshlrev_b32 {v(SV)}, 4, {v(SV)}")
    A(f"v_mov_b32 {v(GS+1)}, 0")
    gather_s()
    def chk_f():
        tagchk([G+4*k for k in range(8)], T)
        A.nop(2)
        A(f"s_and_b64 vcc, vcc, {s(S_GVAL,2)}")
    def re_f():
        gather_f()
    spin_check(chk_f, re_f, count_slot=15)
    A(f"v_cmp_eq_u32 vcc, 1, {v(GP)}")
    A.nop(2)
    for k in range(8):
        A(f"v_cndmask_b32 {v(G+4*k)}, {v(G+4*k)}, {v(G+4*k+2)}, vcc")
    g_, u_, z_, t_ = T, T+1, T+2, T+3
    A(f"v_add_f32 {v(g_)}, {v(G)}, {v(G+8)}\nv_add_f32 {v(g_)}, {v(g_)}, {v(G+16)}\nv_add_f32 {v(g_)}, {v(g_)}, {v(G+24)}")
    A(f"v_add_f32 {v(u_)}, {v(G+4)}, {v(G+12)}\nv_add_f32 {v(u_)}, {v(u_)}, {v(G+20)}\nv_add_f32 {v(u_)}, {v(u_)}, {v(G+28)}")
    rbf(A, g_, t_); rbf(A, u_, t_)
    A(f"v_mul_f32 {v(z_)}, {v(g_)}, {v(g_)}")
    A(f"v_mul_f32 {v(z_)}, 0x3d372713, {v(z_)}")
    A(f"v_add_f32 {v(z_)}, 1.0, {v(z_)}")
    A(f"v_mul_f32 {v(z_)}, {v(z_)}, {v(g_)}")
    A(f"v_mul_f32 {v(z_)}, 0xc0135761, {v(z_)}")
    A(f"v_exp_f32 {v(z_)}, {v(z_)}")
    A.nop(1)
    A(f"v_add_f32 {v(z_)}, 1.0, {v(z_)}")
    A(f"v_rcp_f32 {v(z_)}, {v(z_)}")
    A.nop(1)
    A(f"v_mul_f32 {v(z_)}, {v(z_)}, {v(g_)}")
    rbf(A, z_, t_)
    A(f"v_mul_f32 {v(z_)}, {v(z_)}, {v(u_)}")
    A(f"v_cvt_pk_bf16_f32 {v(z_)}, {v(z_)}, {v(z_)}")
    A(f"v_cmp_gt_u32 vcc, 8, {v(V_C)}")
    A.nop(2)
    for t in range(4):
        A(f"v_cndmask_b32 {v(V_ML+t)}, 0, {v(V_M+t)}, vcc")
    for cp in range(2):
        dst = V_A0 if cp == 0 else V_A1
        for k in range(4):
            A(f"v_and_b32_dpp {v(dst+k)}, {v(z_)}, {v(V_ML+k)} row_newbcast:{cp} row_mask:0xf bank_mask:0xf")
    A.nop(2)
    for cp in range(2):
        dst = V_A0 if cp == 0 else V_A1
        for u in range(5):
            c = "0" if cp == 0 else a(A_Y+4*u, 4)
            A(f"v_mfma_f32_16x16x32_bf16 {a(A_Y+4*u,4)}, {v(dst,4)}, {a(A_WD+4*(cp*5+u),4)}, {c}")
    A(f"v_lshlrev_b32 {v(V_CX)}, 16, {v(V_CX)}")
    call("L_vbody"); setpc_(3)
    def chk_s():
        A(f"v_xor_b32 {v(T)}, {s(S_TLO)}, {v(GS+1)}")
        A(f"v_xor_b32 {v(T+1)}, {s(S_THI)}, {v(GS+3)}")
        A(f"v_or_b32 {v(T)}, {v(T)}, {v(T+1)}")
        A(f"v_cmp_ne_u32 vcc, 0, {v(T)}")
    spin_check(chk_s, gather_s, count_slot=14)
    m_, l_, mg = GS, GS+2, T+4
    P_OA, P_RA, P_YA, P_Y8, P_Y16, P_CV = T+44, T+45, T+46, T+47, T+48, T+49
    S_YST, S_YC = 4, 5
    A(f"v_mov_b32 {v(mg)}, {v(m_)}")
    A(f"v_and_b32 {v(P_OA)}, 1, {v(V_SG)}")
    A(f"v_lshlrev_b32 {v(P_OA)}, 2, {v(P_OA)}")
    A(f"v_max_f32_dpp {v(mg)}, {v(mg)}, {v(mg)} quad_perm:[1,0,3,2] row_mask:0xf bank_mask:0xf")
    A(f"v_lshl_add_u32 {v(P_YA)}, {v(V_C)}, 3, {v(P_OA)}")
    A(f"s_lshl_b32 {s(S_T1)}, {s(S_W)}, 7")
    A(f"v_max_f32_dpp {v(mg)}, {v(mg)}, {v(mg)} quad_perm:[2,3,0,1] row_mask:0xf bank_mask:0xf")
    A(f"v_add_lshl_u32 {v(P_OA)}, {v(P_YA)}, {s(S_T1)}, 2")
    A(f"v_and_b32 {v(P_RA)}, 7, {v(V_C)}")
    A(f"v_max_f32_dpp {v(mg)}, {v(mg)}, {v(mg)} row_half_mirror row_mask:0xf bank_mask:0xf")
    A(f"v_lshl_add_u32 {v(P_RA)}, {v(P_RA)}, 2, {v(V_SG)}")
    A(f"s_lshl_b32 {s(S_T1)}, {s(S_W)}, 5")
    A(f"v_sub_f32 {v(m_)}, {v(m_)}, {v(mg)}")
    A(f"v_add_lshl_u32 {v(P_RA)}, {v(P_RA)}, {s(S_T1)}, 2")
    A(f"v_mul_f32 {v(m_)}, {F32_LOG2E:#x}, {v(m_)}")
    A(f"v_exp_f32 {v(m_)}, {v(m_)}")
    A(f"v_lshrrev_b32 {v(T+5)}, 1, {v(V_SG)}")
    A(f"s_lshl_b32 {s(S_T1)}, {s(S_W)}, 1")
    A(f"v_mul_f32 {v(l_)}, {v(l_)}, {v(m_)}")
    A(f"v_add_u32 {v(T+5)}, {s(S_T1)}, {v(T+5)}")
    A(f"v_mul_u32_u24 {v(T+5)}, 640, {v(T+5)}")
    A(f"v_add_f32_dpp {v(l_)}, {v(l_)}, {v(l_)} quad_perm:[1,0,3,2] row_mask:0xf bank_mask:0xf")
    A(f"v_add_lshl_u32 {v(P_YA)}, {v(P_YA)}, {v(T+5)}, 2")
    A(f"v_lshlrev_b32 {v(P_Y8)}, 3, v0")
    A(f"v_add_f32_dpp {v(l_)}, {v(l_)}, {v(l_)} quad_perm:[2,3,0,1] row_mask:0xf bank_mask:0xf")
    A(f"v_lshlrev_b32 {v(P_Y16)}, 4, v0")
    A(f"v_lshrrev_b32 {v(P_CV)}, 3, {v(V_LANE)}")
    A(f"v_add_f32_dpp {v(l_)}, {v(l_)}, {v(l_)} row_half_mirror row_mask:0xf bank_mask:0xf")
    A(f"v_sub_f32 {v(V_FAC)}, {v(V_MW)}, {v(mg)}")
    A(f"v_mul_f32 {v(V_FAC)}, {F32_LOG2E:#x}, {v(V_FAC)}")
    A(f"v_exp_f32 {v(V_FAC)}, {v(V_FAC)}")
    A(f"v_rcp_f32 {v(l_)}, {v(l_)}")
    A(f"v_mul_u32_u24 {v(P_CV)}, 5120, {v(P_CV)}")
    A(f"v_mul_f32 {v(V_FAC)}, {v(V_FAC)}, {v(l_)}")
    A(f"v_and_b32 {v(T+5)}, 7, {v(V_LANE)}")
    A(f"v_lshl_add_u32 {v(P_CV)}, {v(T+5)}, 4, {v(P_CV)}")
    A(f"s_mul_i32 {s(S_YST)}, {s(S_ID)}, 5120")
    A(f"s_add_u32 {s(S_YST)}, {s(S_YST)}, {Y_OFF}")
    A(f"s_mul_i32 {s(S_YC)}, {s(S_C1)}, {64*5120}")
    A(f"s_lshl_b32 {s(S_T3)}, {s(S_C2)}, 7")
    A(f"s_add_u32 {s(S_YC)}, {s(S_YC)}, {s(S_T3)}")
    A(f"s_add_u32 {s(S_YC)}, {s(S_YC)}, {Y_OFF}")
    if o["pretouch"]:
        A(f"buffer_load_ushort {v(T+50)}, {v(V_F1OFF)}, {s(R_OUT,4)}, 0 offen")
    call("L_vdrain")
    stamp()
    A.nop(8)
    for i in range(4): A(f"v_mul_f32 {v(V_O+i)}, {v(V_O+i)}, {v(V_FAC)}")
    A("s_mov_b32 exec_hi, 0")
    A(f"ds_write_b128 {v(P_OA)}, {v(V_O,4)} offset:{L_OP}")
    A("s_mov_b32 exec_hi, -1")
    A("s_waitcnt lgkmcnt(0)")
    A("s_barrier")
    stamp()
    for w in range(4): A(f"ds_read_b32 {v(T+4+w)}, {v(P_RA)} offset:{L_OP + w*512}")
    A("s_waitcnt lgkmcnt(0)")
    A(f"v_add_f32 {v(T+4)}, {v(T+4)}, {v(T+5)}\nv_add_f32 {v(T+6)}, {v(T+6)}, {v(T+7)}\nv_add_f32 {v(T+4)}, {v(T+4)}, {v(T+6)}")
    PH, PL = T+8, T+9
    A(f"v_cvt_pk_bf16_f32 {v(PH)}, {v(T+4)}, {v(T+4)}")
    A(f"v_and_b32 {v(T+5)}, 0xffff0000, {v(PH)}")
    A(f"v_sub_f32 {v(T+5)}, {v(T+4)}, {v(T+5)}")
    A(f"v_cvt_pk_bf16_f32 {v(PL)}, {v(T+5)}, {v(T+5)}")
    A.nop(2)
    def mkY(dst, tau):
        for k in range(4):
            A(f"v_and_b32_dpp {v(dst+k)}, {v(PH)}, {v(V_M+k)} row_newbcast:{tau} row_mask:0xf bank_mask:0x3")
            A(f"v_and_b32_dpp {v(dst+k)}, {v(PL)}, {v(V_M+k)} row_newbcast:{tau} row_mask:0xf bank_mask:0xc")
    mkY(V_A0, 0)
    for tau in range(8):
        cur, nxt = (V_A0, V_A1) if tau % 2 == 0 else (V_A1, V_A0)
        if tau + 1 < 8: mkY(nxt, tau + 1)
        for u in range(5):
            A(f"v_mfma_f32_16x16x32_bf16 {a(A_Y+4*u,4)}, {v(cur,4)}, {a(A_W+4*(tau*5+u),4)}, {a(A_Y+4*u,4)}")
    A.nop(4)
    for u in range(5):
        if u == 4: A.nop(1)
        A(f"ds_write_b128 {v(P_YA)}, {a(A_Y+4*u,4)} offset:{L_YP + 512*u}")
    A("s_waitcnt lgkmcnt(0)")
    A("s_barrier")
    stamp()
    A(f"s_cmp_eq_u32 {s(S_W)}, 3")
    A("s_cbranch_scc1 L_cons")
    for k in range(8): A(f"ds_read_b64 {v(T+4+2*k,2)}, {v(P_Y8)} offset:{L_YP + 2560*k}")
    A(f"s_cmp_eq_u32 {s(S_W)}, 2")
    A("s_cbranch_scc1 L_y1")
    for k in range(8): A(f"ds_read_b64 {v(T+24+2*k,2)}, {v(P_Y8)} offset:{L_YP + 2560*k + 1536}")
    A.label("L_y1")
    def ysum(base, dst):
        for e in range(2):
            A(f"v_add_f32 {v(base+e)}, {v(base+e)}, {v(base+2+e)}")
            A(f"v_add_f32 {v(base+4+e)}, {v(base+4+e)}, {v(base+6+e)}")
            A(f"v_add_f32 {v(base+8+e)}, {v(base+8+e)}, {v(base+10+e)}")
            A(f"v_add_f32 {v(base+12+e)}, {v(base+12+e)}, {v(base+14+e)}")
        for e in range(2):
            A(f"v_add_f32 {v(base+e)}, {v(base+e)}, {v(base+4+e)}")
            A(f"v_add_f32 {v(base+8+e)}, {v(base+8+e)}, {v(base+12+e)}")
        A(f"v_add_f32 {v(dst)}, {v(base)}, {v(base+8)}")
        A(f"v_add_f32 {v(dst+2)}, {v(base+1)}, {v(base+9)}")
    YD0, YD1 = T+52, T+40
    A(f"v_mov_b32 {v(YD0+1)}, {s(S_TLO)}\nv_mov_b32 {v(YD0+3)}, {s(S_THI)}\nv_mov_b32 {v(YD1+1)}, {s(S_TLO)}\nv_mov_b32 {v(YD1+3)}, {s(S_THI)}")
    A("s_waitcnt lgkmcnt(0)")
    ysum(T+4, YD0)
    A(f"buffer_store_dwordx4 {v(YD0,4)}, {v(P_Y16)}, {s(R_WS,4)}, {s(S_YST)} offen{STF}")
    A(f"s_cmp_eq_u32 {s(S_W)}, 2")
    A("s_cbranch_scc1 L_y2")
    ysum(T+24, YD1)
    A(f"buffer_store_dwordx4 {v(YD1,4)}, {v(P_Y16)}, {s(R_WS,4)}, {s(S_YST)} offen offset:3072{STF}")
    A.label("L_y2")
    if o["stamp"]:
        A("s_waitcnt vmcnt(0)")
        stamp_out()
    A("s_endpgm")
    A.label("L_cons")
    A(f"s_cmp_lt_u32 {s(S_ID)}, 160")
    A("s_cbranch_scc0 L_end")
    YvA, YvB = V_BUF, V_BUF + 32
    def yload(Yv):
        A(f"s_mov_b32 {s(S_T1)}, {s(S_YC)}")
        for j in range(8):
            A(f"buffer_load_dwordx4 {v(Yv+4*j,4)}, {v(P_CV)}, {s(R_WS,4)}, {s(S_T1)} offen{LDF}")
            if j < 7: A(f"s_add_u32 {s(S_T1)}, {s(S_T1)}, {8*5120}")
    def ysum1(Yv, d0, d1):
        for k in (0, 8, 16, 24):
            A(f"v_add_f32 {v(Yv+k)}, {v(Yv+k)}, {v(Yv+k+4)}")
            A(f"v_add_f32 {v(Yv+k+2)}, {v(Yv+k+2)}, {v(Yv+k+6)}")
        for k in (0, 16):
            A(f"v_add_f32 {v(Yv+k)}, {v(Yv+k)}, {v(Yv+k+8)}")
            A(f"v_add_f32 {v(Yv+k+2)}, {v(Yv+k+2)}, {v(Yv+k+10)}")
        A(f"v_add_f32 {v(d0)}, {v(Yv)}, {v(Yv+16)}")
        A(f"v_add_f32 {v(d1)}, {v(Yv+2)}, {v(Yv+18)}")
    a0, a1 = T+4, T+5
    A(f"s_mov_b32 {s(S_SPIN)}, 0")
    yload(YvA)
    yload(YvB)
    A.label("L_cp")
    A("s_waitcnt vmcnt(8)")
    tagchk([YvA+4*j for j in range(8)], T+1)
    A.nop(5)
    A("s_cbranch_vccz L_cA")
    yload(YvA)
    A("s_waitcnt vmcnt(8)")
    tagchk([YvB+4*j for j in range(8)], T+1)
    A.nop(5)
    A("s_cbranch_vccz L_cB")
    yload(YvB)
    A(f"s_add_u32 {s(S_SPIN)}, {s(S_SPIN)}, 1")
    A(f"s_cmp_lt_u32 {s(S_SPIN)}, {SPIN_MAX}")
    A("s_cbranch_scc1 L_cp")
    A.label("L_cA")
    ysum1(YvA, a0, a1)
    A("s_branch L_cfin")
    A.label("L_cB")
    ysum1(YvB, a0, a1)
    A.label("L_cfin")
    if o["stamp"]: A(f"v_writelane_b32 {v(V_ST)}, {s(S_SPIN)}, 13")
    A.nop(2)
    A(f"v_permlane32_swap_b32 {v(a0)}, {v(a1)}")
    A.nop(2)
    A(f"v_add_f32 {v(a0)}, {v(a0)}, {v(a1)}")
    A(f"v_mov_b32 {v(a1)}, {v(a0)}")
    A.nop(2)
    A(f"v_permlane16_swap_b32 {v(a0)}, {v(a1)}")
    A.nop(2)
    A(f"v_add_f32 {v(a0)}, {v(a0)}, {v(a1)}")
    A.nop(2)
    A(f"v_add_f32_dpp {v(a0)}, {v(a0)}, {v(a0)} row_ror:8 row_mask:0xf bank_mask:0xf")
    A(f"v_add_f32 {v(a0)}, {v(a0)}, {v(V_CX)}")
    A(f"v_cvt_pk_bf16_f32 {v(a0)}, {v(a0)}, {v(a0)}")
    A("s_mov_b32 exec_lo, 0xff\ns_mov_b32 exec_hi, 0xff")
    A(f"buffer_store_short {v(a0)}, {v(V_F1OFF)}, {s(R_OUT,4)}, 0 offen")
    A(f"s_cmp_eq_u32 {s(S_ID)}, 0")
    A("s_cbranch_scc0 L_noep")
    A(f"v_mov_b32 {v(T+2)}, {s(S_TLO)}\nv_mov_b32 {v(T+3)}, {s(S_THI)}\nv_mov_b32 {v(T+1)}, 0")
    A(f"s_mov_b32 {s(S_T1)}, {EP_OFF}")
    A("s_mov_b64 exec, 1")
    A(f"buffer_store_dwordx2 {v(T+2,2)}, {v(T+1)}, {s(R_WS,4)}, {s(S_T1)} offen{STF}")
    A.label("L_noep")
    if o["stamp"]:
        A("s_waitcnt vmcnt(0)")
        A("s_mov_b64 exec, -1")
        stamp_out()
    A.label("L_end")
    A("s_endpgm")
    A.label("L_kbody")
    for i in range(32):
        n = i % 16
        b = V_BUF + 4*i
        if i % 8 == 0: trace()
        A("s_waitcnt vmcnt(31)")
        A(f"v_dot2_f32_bf16 {v(V_ACC+n)}, {v(b)}, {v(V_Q)}, 0")
        for k in range(1, 1 if o["strip"] else 4):
            A(f"v_dot2_f32_bf16 {v(V_ACC+n)}, {v(b+k)}, {v(V_Q+k)}, {v(V_ACC+n)}")
        if o["pad"]: A.nop(o["pad"])
        A(f"buffer_load_dwordx4 {v(b,4)}, {v(V_KOFF)}, {s(R_CUR,4)}, {s(S_SOFF)} offen{NTK}")
        A(f"s_add_u32 {s(S_SOFF)}, {s(S_SOFF)}, 4096")
        if n == 15:
            x = V_ACC
            A.nop(2)
            for t in range(8):
                A(f"v_add_f32_dpp {v(x+t)}, {v(x+t)}, {v(x+t)} row_ror:8 row_mask:0xf bank_mask:0x3")
                A(f"v_add_f32_dpp {v(x+t)}, {v(x+t+8)}, {v(x+t+8)} row_ror:8 row_mask:0xf bank_mask:0xc")
            for t in range(4):
                A(f"v_add_f32_dpp {v(x+t)}, {v(x+t)}, {v(x+t)} row_half_mirror row_mask:0xf bank_mask:0x5")
                A(f"v_add_f32_dpp {v(x+t)}, {v(x+t+4)}, {v(x+t+4)} row_half_mirror row_mask:0xf bank_mask:0xa")
            A.nop(2)
            for t in range(4):
                A(f"v_add_f32_dpp {v(x+t)}, {v(x+t)}, {v(x+t)} quad_perm:[2,3,0,1] row_mask:0xf bank_mask:0xf")
            A(f"v_cndmask_b32 {v(x)}, {v(x)}, {v(x+2)}, {s(S_M2,2)}")
            A(f"v_cndmask_b32 {v(x+1)}, {v(x+1)}, {v(x+3)}, {s(S_M2,2)}")
            A.nop(2)
            A(f"v_add_f32_dpp {v(x)}, {v(x)}, {v(x)} quad_perm:[1,0,3,2] row_mask:0xf bank_mask:0xf")
            A(f"v_add_f32_dpp {v(x+1)}, {v(x+1)}, {v(x+1)} quad_perm:[1,0,3,2] row_mask:0xf bank_mask:0xf")
            dst = V_PC0 if i == 15 else V_PC1
            A(f"v_cndmask_b32 {v(dst)}, {v(x)}, {v(x+1)}, {s(S_M1,2)}")
    A(f"s_setpc_b64 {s(S_RET,2)}")
    for lbl, refill in (("L_vbody", True), ("L_vdrain", False)):
        A.label(lbl)
        for i in range(32):
            n = i % 16
            b = V_BUF + 4*i
            P = V_PC0 if i < 16 else V_PC1
            if i % 8 == 0: trace()
            for k in range(1 if o["strip"] else 4):
                A(f"v_and_b32_dpp {v(V_A0+k)}, {v(P)}, {v(V_M+k)} row_newbcast:{n} row_mask:0xf bank_mask:0xf")
            if o["pad"]: A.nop(o["pad"])
            A(f"s_waitcnt vmcnt({31 if refill else 31-i})")
            A.nop(1)
            A(f"v_mfma_f32_16x16x32_bf16 {v(V_O,4)}, {v(V_A0,4)}, {v(b,4)}, {v(V_O,4)}")
            if refill:
                A(f"buffer_load_dwordx4 {v(b,4)}, {v(V_KOFF)}, {s(R_CUR,4)}, {s(S_SOFF)} offen{NTK}")
                A(f"s_add_u32 {s(S_SOFF)}, {s(S_SOFF)}, 4096")
        A(f"s_setpc_b64 {s(S_RET,2)}")
    A.L.append(f""".section .rodata,"a"
.p2align 6
.amdhsa_kernel {NAME}
  .amdhsa_next_free_vgpr 512
  .amdhsa_next_free_sgpr {NSGPR}
  .amdhsa_accum_offset 256
  .amdhsa_group_segment_fixed_size 0
  .amdhsa_kernarg_size 96
  .amdhsa_user_sgpr_count 2
  .amdhsa_user_sgpr_kernarg_segment_ptr 1
  .amdhsa_system_sgpr_workgroup_id_x 1
  .amdhsa_float_denorm_mode_32 3
  .amdhsa_float_denorm_mode_16_64 3
.end_amdhsa_kernel""")
    return A.text()

def dump(A, regs):
    A("s_waitcnt vmcnt(0) lgkmcnt(0)")
    A(f"s_mov_b32 s60, s{P_WS}\ns_mov_b32 s61, s{P_WS+1}\ns_mov_b32 s62, 0x10000000\ns_mov_b32 s63, 0x20000")
    A(f"s_lshl_b32 s{S_T1}, s{S_ID}, 10")
    A(f"s_add_u32 s{S_T1}, s{S_T1}, {DBG_OFF}")
    A(f"v_lshlrev_b32 v79, 2, v0")
    for k, r in enumerate(regs):
        A(f"buffer_store_dword v{r}, v79, s[60:63], s{S_T1} offen")
        A(f"s_add_u32 s{S_T1}, s{S_T1}, {65536*4}")
    A("s_waitcnt vmcnt(0)")
    A("s_endpgm")

if __name__ == "__main__":
    import json
    opts = json.loads(sys.argv[2]) if len(sys.argv) > 2 else {}
    open(sys.argv[1], "w").write(gen(opts))
```

```python
import sys

NAME = "parallel_sum__gqa_block_cached__geglu_ffn__decode_kernel"

class Asm:
    def __init__(self):
        self.L = []
        self.fifo = 0
    def __call__(self, s):
        for line in s.split("\n"):
            t = line.strip()
            if not t: continue
            self.L.append(t if t.endswith(":") else "  " + t)
    def label(self, s): self.L.append(s + ":")
    def nop(self, n):
        while n > 0:
            k = min(n, 16)
            self.L.append(f"  s_nop {k-1}")
            n -= k
    def vm(self, s):
        self(s)
        self.fifo += 1
        return self.fifo - 1
    def wait_vm(self, idx, extra=""):
        n = min(self.fifo - 1 - idx, 63)
        self(f"s_waitcnt vmcnt({n}){extra}")
    def text(self): return "\n".join(self.L) + "\n"


HEADER = """; Fused decode step:  out = x + attention(LN(x)) @ wo + geglu_ffn(LN(x)),  one launch, 256 workgroups x 4 waves.
;      gate/up projection; partial sums go to the workspace as tagged granules {{v0, tag_lo, v1, tag_hi}}.
"""

def v(i, n=1): return f"v{i}" if n == 1 else f"v[{i}:{i+n-1}]"
def a(i, n=1): return f"a{i}" if n == 1 else f"a[{i}:{i+n-1}]"
def s(i, n=1): return f"s{i}" if n == 1 else f"s[{i}:{i+n-1}]"

QX_OFF  = 0
QX_SIZE = 32*4*8*1024
F_OFF   = QX_OFF + QX_SIZE
F_ROW   = 864*16
F_SIZE  = 8*4*F_ROW
ST_OFF  = F_OFF + F_SIZE
ST_SIZE = 128*128
Y_OFF   = ST_OFF + ST_SIZE
Y_SIZE  = 256*5120
EP_OFF  = Y_OFF + Y_SIZE
WS_SIZE = EP_OFF + 256
DBG_OFF = 4 << 20
assert WS_SIZE <= DBG_OFF

L_XN = 0
L_QP = 10240
L_FP = 18432
L_QG = 26624
L_OP = 28672
L_YP = 30720
LDS_SIZE = 51200

P_X, P_K, P_V, P_WQ, P_WO, P_BX, P_WG, P_WU, P_WD, P_OUT, P_DBG, P_WS = [4+2*i for i in range(12)]
R_K, R_V, R_CUR, R_WQ, R_WO, R_F1, R_WD, R_WS, R_X, R_OUT = [28+4*i for i in range(10)]
S_TLO, S_THI = 68, 69
S_GVAL = 70
S_W, S_H, S_HALF, S_B, S_BH, S_SOFF, S_T0, S_T1, S_T2, S_T3 = range(72, 82)
S_RET = 82
S_M2 = 84
S_M1 = 86
S_FVAL = 88
S_SPIN = 90
S_ID = 91
S_WOOFF = 92
S_C1 = 93
S_C2 = 94
S_T4 = 95
S_EX = 96
S_J = 3
NSGPR = 100
S_TR = 15

V_TID, V_LANE, V_C, V_SG, V_KOFF, V_WQOFF, V_WOOFF, V_F1OFF, V_FV0, V_CX, V_FAC, V_MW, V_LW, V_FV1, V_PC0, V_PC1 = range(16)
V_T = 16
V_O = 80
V_A0 = 84
V_A1 = 88
V_ML = 92
V_M = 96
V_Q = 100
V_SC = 104
V_ACC = 112
V_BUF = 128
D = 32

A_W = 0
A_F1 = 20
A_WD = 160
A_Y = 200
A_F = 220
A_Q = 236

SPIN_MAX = 100000
F32_INV640 = 0x3acccccd
F32_EPS = 0x3727c5ac
F32_SCALE = 0x3db504f3
F32_LOG2E = 0x3fb8aa3b
TAG_HI_INC = 0x61c88647

def xrow(A, op, x, tmp):
    A(f"v_mov_b32 {v(tmp)}, {v(x)}")
    A.nop(2)
    A(f"v_permlane16_swap_b32 {v(x)}, {v(tmp)}")
    A.nop(2)
    A(f"{op} {v(x)}, {v(x)}, {v(tmp)}")
    A(f"v_mov_b32 {v(tmp)}, {v(x)}")
    A.nop(2)
    A(f"v_permlane32_swap_b32 {v(x)}, {v(tmp)}")
    A.nop(2)
    A(f"{op} {v(x)}, {v(x)}, {v(tmp)}")

def allreduce(A, op, x, tmp):
    for r in (8, 4, 2, 1):
        A.nop(2)
        A(f"{op}_dpp {v(x)}, {v(x)}, {v(x)} row_ror:{r} row_mask:0xf bank_mask:0xf")
    xrow(A, op, x, tmp)

def allreduce2(A, op, x, y, tx, ty):
    A.nop(1)
    for r in (8, 4, 2, 1):
        A(f"{op}_dpp {v(x)}, {v(x)}, {v(x)} row_ror:{r} row_mask:0xf bank_mask:0xf")
        A(f"{op}_dpp {v(y)}, {v(y)}, {v(y)} row_ror:{r} row_mask:0xf bank_mask:0xf")
        A.nop(1)
    A(f"v_mov_b32 {v(tx)}, {v(x)}")
    A(f"v_mov_b32 {v(ty)}, {v(y)}")
    A.nop(1)
    A(f"v_permlane16_swap_b32 {v(x)}, {v(tx)}")
    A(f"v_permlane16_swap_b32 {v(y)}, {v(ty)}")
    A.nop(1)
    A(f"{op} {v(x)}, {v(x)}, {v(tx)}")
    A(f"{op} {v(y)}, {v(y)}, {v(ty)}")
    A(f"v_mov_b32 {v(tx)}, {v(x)}")
    A(f"v_mov_b32 {v(ty)}, {v(y)}")
    A.nop(1)
    A(f"v_permlane32_swap_b32 {v(x)}, {v(tx)}")
    A(f"v_permlane32_swap_b32 {v(y)}, {v(ty)}")
    A.nop(1)
    A(f"{op} {v(x)}, {v(x)}, {v(tx)}")
    A(f"{op} {v(y)}, {v(y)}, {v(ty)}")

def rbf(A, x, tmp):
    A(f"v_cvt_pk_bf16_f32 {v(tmp)}, {v(x)}, {v(x)}")
    A(f"v_and_b32 {v(x)}, 0xffff0000, {v(tmp)}")

def gen(opts=None):
    o = dict(nt_kv=" nt", nt_w="", dump=None, stamp=False, stf=" sc1", ldf=" sc1", ysleep=2, gpos=16,
             pretouch=True, warm_tail=False, nowo=False, wo_first=False, thr=None, pad=0, strip=False, map=0, align=True, addk=False, kpad=0, vpad=0, shift=0)
    if opts: o.update(opts)
    NTK = o["nt_kv"]; NTW = o["nt_w"]; STF = o["stf"]; LDF = o["ldf"]
    A = Asm()
    T = V_T
    V_ST = T + 58
    nst = [0]
    def stamp(slot=None):
        if not o["stamp"]: return
        A("s_memrealtime s[98:99]")
        A("s_waitcnt lgkmcnt(0)")
        A(f"v_writelane_b32 {v(V_ST)}, s98, {nst[0] if slot is None else slot}")
        if slot is None: nst[0] += 1
    def trace():
        if not o.get("trace"): return
        A("s_memrealtime s[98:99]")
        A("s_waitcnt lgkmcnt(0)")
        A(f"s_mov_b32 m0, {s(S_TR)}")
        A("s_nop 0")
        A(f"v_writelane_b32 {v(T+56)}, s98, m0")
        A(f"s_add_u32 {s(S_TR)}, {s(S_TR)}, 1")
    def stamp_out():
        if not o["stamp"]: return
        if o.get("trace"):
            A(f"s_lshl_b32 {s(S_T1)}, {s(S_ID)}, 2")
            A(f"s_add_u32 {s(S_T1)}, {s(S_T1)}, {s(S_W)}")
            A(f"s_lshl_b32 {s(S_T1)}, {s(S_T1)}, 8")
            A(f"s_add_u32 {s(S_T1)}, {s(S_T1)}, {DBG_OFF + 65536}")
            A(f"s_mov_b32 s60, s{P_WS}\ns_mov_b32 s61, s{P_WS+1}\ns_mov_b32 s62, 0x10000000\ns_mov_b32 s63, 0x20000")
            A("s_mov_b64 exec, -1")
            A(f"v_lshlrev_b32 {v(T+57)}, 2, {v(V_LANE)}")
            A(f"buffer_store_dword {v(T+56)}, {v(T+57)}, s[60:63], {s(S_T1)} offen")
        stamp(10)
        A(f"s_lshl_b32 {s(S_T1)}, {s(S_ID)}, 2")
        A(f"s_add_u32 {s(S_T1)}, {s(S_T1)}, {s(S_W)}")
        A(f"s_lshl_b32 {s(S_T1)}, {s(S_T1)}, 6")
        A(f"s_add_u32 {s(S_T1)}, {s(S_T1)}, {DBG_OFF}")
        A(f"s_mov_b32 s60, s{P_WS}\ns_mov_b32 s61, s{P_WS+1}\ns_mov_b32 s62, 0x10000000\ns_mov_b32 s63, 0x20000")
        A("s_mov_b64 exec, 0xffff")
        A(f"v_lshlrev_b32 {v(T+57)}, 2, {v(V_LANE)}")
        A(f"buffer_store_dword {v(V_ST)}, {v(T+57)}, s[60:63], {s(S_T1)} offen")
    A.L.append(f"; @launch grid=(256,1,1) block=(256,1,1) lds={LDS_SIZE}")
    A.L.append(HEADER.format().rstrip("\n"))
    A.L.append('.amdgcn_target "amdgcn-amd-amdhsa--gfx950"')
    A.L.append(".text")
    A.L.append(f".globl {NAME}")
    A.L.append(".p2align 8")
    A.L.append(f".type {NAME},@function")
    A.label(NAME)
    A("s_cmp_ge_u32 s2, 256")
    A("s_cbranch_scc1 L_end")
    A("s_load_dwordx16 s[4:19], s[0:1], 0")
    A("s_load_dwordx8 s[20:27], s[0:1], 64")
    if o["stamp"]:
        A(f"v_mov_b32 {v(V_ST)}, 0")
        A("s_memrealtime s[98:99]")
    A(f"v_and_b32 {v(V_LANE)}, 63, v0")
    A(f"v_lshrrev_b32 {v(T)}, 6, v0")
    A(f"s_mov_b32 {s(S_ID)}, s2")
    A(f"v_readfirstlane_b32 {s(S_W)}, {v(T)}")
    if o["map"] == 0:
        A(f"s_and_b32 {s(S_H)}, s2, 7")
        A(f"s_lshl_b32 {s(S_H)}, {s(S_H)}, 2")
        A(f"s_bfe_u32 {s(S_HALF)}, s2, 0x20004")
        A(f"s_or_b32 {s(S_H)}, {s(S_H)}, {s(S_HALF)}")
        A(f"s_bfe_u32 {s(S_HALF)}, s2, 0x10003")
    elif o["map"] == 1:
        A(f"s_and_b32 {s(S_H)}, s2, 31")
        A(f"s_bfe_u32 {s(S_HALF)}, s2, 0x10005")
    elif o["map"] == 2:
        A(f"s_and_b32 {s(S_H)}, s2, 7")
        A(f"s_lshl_b32 {s(S_H)}, {s(S_H)}, 2")
        A(f"s_bfe_u32 {s(S_HALF)}, s2, 0x20003")
        A(f"s_or_b32 {s(S_H)}, {s(S_H)}, {s(S_HALF)}")
        A(f"s_bfe_u32 {s(S_HALF)}, s2, 0x10005")
    A(f"s_lshr_b32 {s(S_B)}, s2, 6")
    A(f"s_lshl_b32 {s(S_J)}, {s(S_B)}, 1")
    A(f"s_or_b32 {s(S_J)}, {s(S_J)}, {s(S_HALF)}")
    A(f"s_lshl_b32 {s(S_T0)}, {s(S_B)}, 5")
    A(f"s_add_u32 {s(S_BH)}, {s(S_T0)}, {s(S_H)}")
    A(f"v_and_b32 {v(V_C)}, 15, {v(V_LANE)}")
    A(f"v_lshrrev_b32 {v(V_SG)}, 4, {v(V_LANE)}")
    A(f"v_lshlrev_b32 {v(T+1)}, 4, {v(V_LANE)}")
    A(f"v_lshlrev_b32 {v(T+2)}, 4, {v(V_C)}")
    A(f"s_lshl_b32 {s(S_T0)}, {s(S_BH)}, 20")
    A(f"s_lshl_b32 {s(S_T1)}, {s(S_HALF)}, 19")
    A(f"s_add_u32 {s(S_T0)}, {s(S_T0)}, {s(S_T1)}")
    A(f"s_lshl_b32 {s(S_T1)}, {s(S_W)}, 10")
    A(f"v_add_u32 {v(V_KOFF)}, {s(S_T1)}, {v(T+1)}")
    A(f"v_lshl_add_u32 {v(V_WQOFF)}, {v(V_SG)}, 13, {v(T+2)}")
    A(f"v_lshlrev_b32 {v(T+8)}, 2, {v(V_LANE)}")
    A(f"s_mul_i32 {s(S_T2)}, {s(S_J)}, 80")
    A(f"s_mul_i32 {s(S_T3)}, {s(S_W)}, 20")
    A(f"s_add_u32 {s(S_C1)}, {s(S_T2)}, {s(S_T3)}")
    A(f"s_lshl_b32 {s(S_T2)}, {s(S_C1)}, 13")
    A(f"s_lshl_b32 {s(S_T3)}, {s(S_H)}, 8")
    A(f"s_add_u32 {s(S_T2)}, {s(S_T2)}, {s(S_T3)}")
    A(f"s_mul_i32 {s(S_T1)}, {s(S_W)}, 1280")
    A("s_waitcnt lgkmcnt(0)")
    if o["stamp"]:
        A(f"v_writelane_b32 {v(V_ST)}, s98, 0"); nst[0] = 1
    A(f"s_mov_b32 {s(S_SPIN)}, {EP_OFF}")
    A(f"s_load_dwordx2 {s(S_TLO,2)}, {s(P_WS,2)}, {s(S_SPIN)}")
    def srd(r, p, size, add=None):
        if add is None:
            A(f"s_mov_b32 {s(r)}, {s(p)}")
            A(f"s_mov_b32 {s(r+1)}, {s(p+1)}")
        else:
            A(f"s_add_u32 {s(r)}, {s(p)}, {s(add)}")
            A(f"s_addc_u32 {s(r+1)}, {s(p+1)}, 0")
        A(f"s_mov_b32 {s(r+2)}, {size}")
        A(f"s_mov_b32 {s(r+3)}, 0x20000")
    srd(R_X, P_X, 5120)
    VX = T + 10
    xl = []
    for k in range(5):
        xl.append(A.vm(f"buffer_load_dword {v(VX+k)}, {v(T+8)}, {s(R_X,4)}, {s(S_T1)} offen offset:{256*k}"))
    srd(R_WQ, P_WQ, 640*8192)
    wq_idx = []
    for t in range(5):
        wq_idx.append(A.vm(f"buffer_load_dwordx4 {a(A_W+4*t,4)}, {v(V_WQOFF)}, {s(R_WQ,4)}, {s(S_T2)} offen{NTW}"))
        if t < 4: A(f"s_add_u32 {s(S_T2)}, {s(S_T2)}, 32768")
    srd(R_CUR, P_K, 1 << 19, add=S_T0)
    A(f"s_mov_b32 {s(S_SOFF)}, 0")
    k_idx = []
    def k_load(n=1):
        for _ in range(n):
            if len(k_idx) >= D: return
            i = len(k_idx)
            k_idx.append(A.vm(f"buffer_load_dwordx4 {v(V_BUF+4*i,4)}, {v(V_KOFF)}, {s(R_CUR,4)}, {s(S_SOFF)} offen{NTK}"))
            A(f"s_add_u32 {s(S_SOFF)}, {s(S_SOFF)}, 4096")
    k_load(2)
    srd(R_V, P_V, 1 << 19, add=S_T0)
    srd(R_WS, P_WS, WS_SIZE)
    srd(R_WO, P_WO, 4096*1280)
    srd(R_WD, P_WD, 1728*1280)
    srd(R_OUT, P_OUT, 5120)

    A(f"s_bitcmp1_b32 {s(S_ID)}, 2")
    A(f"s_cselect_b32 {s(R_F1)}, {s(P_WU)}, {s(P_WG)}")
    A(f"s_cselect_b32 {s(R_F1+1)}, {s(P_WU+1)}, {s(P_WG+1)}")
    A(f"s_cmp_lt_u32 {s(S_ID)}, 216")
    A(f"s_cselect_b32 {s(R_F1+2)}, {640*3456}, 0")
    A(f"s_mov_b32 {s(R_F1+3)}, 0x20000")
    A(f"v_mul_u32_u24 {v(V_WOOFF)}, 1280, {v(V_SG)}")
    A(f"v_add_u32 {v(V_WOOFF)}, {v(V_WOOFF)}, {v(T+2)}")
    t0, t1, t2 = T+16, T+17, T+18
    A(f"v_bfe_u32 {v(t0)}, {v(V_LANE)}, 3, 1")
    A(f"v_lshl_add_u32 {v(t0)}, {v(V_SG)}, 1, {v(t0)}")
    A(f"v_mul_u32_u24 {v(V_F1OFF)}, 3456, {v(t0)}")
    A(f"v_and_b32 {v(t1)}, 7, {v(V_LANE)}")
    A(f"v_lshl_add_u32 {v(V_F1OFF)}, {v(t1)}, 4, {v(V_F1OFF)}")
    A(f"s_and_b32 {s(S_T1)}, {s(S_ID)}, 3")
    A(f"s_mul_i32 {s(S_T1)}, {s(S_T1)}, 160")
    A(f"s_mul_i32 {s(S_T3)}, {s(S_W)}, 40")
    A(f"s_add_u32 {s(S_T4)}, {s(S_T1)}, {s(S_T3)}")
    A(f"s_mul_i32 {s(S_T1)}, {s(S_T4)}, 3456")
    A(f"s_lshr_b32 {s(S_C2)}, {s(S_ID)}, 3")
    A(f"s_lshl_b32 {s(S_T3)}, {s(S_C2)}, 7")
    A(f"s_add_u32 {s(S_T1)}, {s(S_T1)}, {s(S_T3)}")
    f1_idx = []
    def f1_load():
        tau = len(f1_idx)
        f1_idx.append(A.vm(f"buffer_load_dwordx4 {a(A_F1+4*tau,4)}, {v(V_F1OFF)}, {s(R_F1,4)}, {s(S_T0)} offen{NTW}"))
        if tau < 4: A(f"s_add_u32 {s(S_T0)}, {s(S_T0)}, {8*3456}")
    A(f"s_mov_b32 {s(S_T0)}, {s(S_T1)}")
    A(f"v_and_b32 {v(t0)}, 1, {v(V_LANE)}")
    A(f"v_cmp_eq_u32 vcc, 1, {v(t0)}")
    A(f"v_mov_b32 {v(t1)}, 0xffff")
    A(f"v_mov_b32 {v(t2)}, 0xffff0000")
    A(f"v_cndmask_b32 {v(t1)}, {v(t1)}, {v(t2)}, vcc")
    A(f"v_bfe_u32 {v(t0)}, {v(V_LANE)}, 1, 2")
    for t in range(4):
        A(f"v_cmp_eq_u32 vcc, {t}, {v(t0)}")
        A.nop(2)
        A(f"v_cndmask_b32 {v(V_M+t)}, 0, {v(t1)}, vcc")
    A(f"s_mov_b32 {s(S_M2)}, 0xcccccccc\ns_mov_b32 {s(S_M2+1)}, 0xcccccccc")
    A(f"s_mov_b32 {s(S_M1)}, 0xaaaaaaaa\ns_mov_b32 {s(S_M1+1)}, 0xaaaaaaaa")
    A(f"s_mov_b32 {s(S_FVAL)}, 0x00ff00ff\ns_mov_b32 {s(S_FVAL+1)}, 0xff00ff00")
    XA, XQ, XF = T+50, T+51, T+52
    A(f"v_and_b32 {v(XA)}, 1, {v(V_LANE)}")
    A(f"v_mul_u32_u24 {v(XA)}, 320, {v(XA)}")
    A(f"v_lshrrev_b32 {v(t0)}, 1, {v(V_LANE)}")
    A(f"v_add_lshl_u32 {v(XA)}, {v(XA)}, {v(t0)}, 2")
    A(f"s_mul_i32 {s(S_T1)}, {s(S_W)}, 2560")
    A(f"v_add_u32 {v(XA)}, {s(S_T1)}, {v(XA)}")
    A(f"v_bfe_u32 {v(XQ)}, {v(V_LANE)}, 3, 1")
    A(f"v_mul_u32_u24 {v(XQ)}, 2560, {v(XQ)}")
    A(f"v_mul_u32_u24 {v(t0)}, 640, {v(V_SG)}")
    A(f"v_add3_u32 {v(XQ)}, {v(XQ)}, {v(t0)}, {s(S_C1)}")
    A(f"v_bfe_u32 {v(t0)}, {v(V_LANE)}, 3, 1")
    A(f"v_lshl_add_u32 {v(t0)}, {v(V_SG)}, 1, {v(t0)}")
    A(f"v_and_b32 {v(t0)}, 3, {v(t0)}")
    A(f"v_mul_u32_u24 {v(XF)}, 160, {v(t0)}")
    A(f"v_lshrrev_b32 {v(t0)}, 1, {v(V_SG)}")
    A(f"v_add_u32 {v(XF)}, {v(XF)}, {v(t0)}")
    A(f"v_lshlrev_b32 {v(XF)}, 2, {v(XF)}")
    A(f"v_add_u32 {v(XF)}, {s(S_T4)}, {v(XF)}")
    A.wait_vm(xl[-1])
    F = T + 20
    DV = T + 32
    S1, S2, TM1, TM2, MEAN, MB, RS, SD = T+44, T+45, T+46, T+47, T+48, T+49, T+53, T+54
    for k in range(5):
        A(f"v_lshlrev_b32 {v(F+2*k)}, 16, {v(VX+k)}")
        A(f"v_and_b32 {v(F+2*k+1)}, 0xffff0000, {v(VX+k)}")
    A(f"v_readfirstlane_b32 {s(S_T1)}, {v(F)}")
    k_load(2)
    for k in range(10): A(f"v_subrev_f32 {v(DV+k)}, {s(S_T1)}, {v(F+k)}")
    A(f"v_add_f32 {v(S1)}, {v(DV)}, {v(DV+1)}")
    A(f"v_mul_f32 {v(S2)}, {v(DV)}, {v(DV)}")
    A(f"v_fmac_f32 {v(S2)}, {v(DV+1)}, {v(DV+1)}")
    for k in range(2, 10):
        A(f"v_add_f32 {v(S1)}, {v(S1)}, {v(DV+k)}")
        A(f"v_fmac_f32 {v(S2)}, {v(DV+k)}, {v(DV+k)}")
    f1_load(); f1_load()
    allreduce2(A, "v_add_f32", S1, S2, TM1, TM2)
    f1_load(); f1_load(); f1_load()
    A(f"v_mul_f32 {v(S1)}, {F32_INV640:#x}, {v(S1)}")
    A(f"v_mul_f32 {v(S2)}, {F32_INV640:#x}, {v(S2)}")
    A(f"v_add_f32 {v(MB)}, {s(S_T1)}, {v(S1)}")
    A(f"v_fma_f32 {v(S2)}, -{v(S1)}, {v(S1)}, {v(S2)}")
    rbf(A, MB, TM1)
    rbf(A, S2, TM2)
    A(f"v_add_f32 {v(S2)}, {F32_EPS:#x}, {v(S2)}")
    rbf(A, S2, TM2)
    A(f"v_sqrt_f32 {v(SD)}, {v(S2)}")
    A.nop(1)
    rbf(A, SD, TM2)
    A(f"v_rcp_f32 {v(RS)}, {v(SD)}")
    k_load(2)
    for k in range(10): A(f"v_sub_f32 {v(DV+k)}, {v(F+k)}, {v(MB)}")
    for k in range(5): A(f"v_cvt_pk_bf16_f32 {v(VX+k)}, {v(DV+2*k)}, {v(DV+2*k+1)}")
    for k in range(5):
        A(f"v_lshlrev_b32 {v(DV+2*k)}, 16, {v(VX+k)}")
        A(f"v_and_b32 {v(DV+2*k+1)}, 0xffff0000, {v(VX+k)}")
    for k in range(10): A(f"v_mul_f32 {v(DV+k)}, {v(DV+k)}, {v(RS)}")
    for k in range(10): A(f"v_cvt_pk_bf16_f32 {v(DV+k)}, {v(DV+k)}, {v(DV+k)}")
    for k in range(5):
        A(f"ds_write_b32 {v(XA)}, {v(DV+2*k)} offset:{L_XN + 128*k}")
        A(f"ds_write_b32 {v(XA)}, {v(DV+2*k+1)} offset:{L_XN + 128*k + 640}")
    k_load(2)
    A("s_waitcnt lgkmcnt(0)")
    A(f"s_add_u32 {s(S_TLO)}, {s(S_TLO)}, 1")
    A(f"s_add_u32 {s(S_THI)}, {s(S_THI)}, {TAG_HI_INC:#x}")
    A("s_barrier")
    stamp()
    XV = T
    for beta in range(2):
        for tau in range(5):
            A(f"ds_read_b32 {v(XV+5*beta+tau)}, {v(XQ)} offset:{L_XN + beta*5120 + 4*tau}")
    FX = T + 10
    for tau in range(5):
        for b in range(4):
            A(f"ds_read_b32 {v(FX+4*tau+b)}, {v(XF)} offset:{L_XN + b*2560 + tau*8}")
    QA = T + 55
    A(f"v_lshrrev_b32 {v(QA)}, 1, {v(V_SG)}")
    A(f"s_lshl_b32 {s(S_T1)}, {s(S_W)}, 2")
    A(f"v_add_u32 {v(QA)}, {s(S_T1)}, {v(QA)}")
    A(f"v_lshlrev_b32 {v(QA)}, 7, {v(QA)}")
    A(f"v_lshl_add_u32 {v(QA)}, {v(V_C)}, 3, {v(QA)}")
    A(f"v_and_b32 {v(T+56)}, 1, {v(V_SG)}")
    A(f"v_lshl_add_u32 {v(QA)}, {v(T+56)}, 2, {v(QA)}")
    A(f"v_lshlrev_b32 {v(QA)}, 2, {v(QA)}")
    def mkA(dst, src, masks=V_M):
        for k in range(4): A(f"v_and_b32 {v(dst+k)}, {v(src)}, {v(masks+k)}")
    A.wait_vm(wq_idx[-1], " lgkmcnt(0)")
    seq = [(beta, tau) for tau in range(5) for beta in range(2)]
    mkA(V_A0, XV + 5*seq[0][0] + seq[0][1])
    for n, (beta, tau) in enumerate(seq):
        cur, nxt = (V_A0, V_A1) if n % 2 == 0 else (V_A1, V_A0)
        if n + 1 < len(seq): mkA(nxt, XV + 5*seq[n+1][0] + seq[n+1][1])
        else: A.nop(2)
        c = "0" if tau == 0 else a(A_Q+4*beta, 4)
        A(f"v_mfma_f32_16x16x32_bf16 {a(A_Q+4*beta,4)}, {v(cur,4)}, {a(A_W+4*tau,4)}, {c}")
    k_load(2)
    A.nop(4)
    for beta in range(2):
        A(f"ds_write_b128 {v(QA)}, {a(A_Q+4*beta,4)} offset:{L_QP + beta*1024}")
    QR = T + 56
    A(f"v_lshlrev_b32 {v(QR)}, 3, {v(V_LANE)}")
    A(f"s_lshl_b32 {s(S_T1)}, {s(S_W)}, 9")
    A(f"v_add_u32 {v(QR)}, {s(S_T1)}, {v(QR)}")
    A("s_waitcnt lgkmcnt(0)")
    A("s_barrier")
    for w in range(4):
        A(f"ds_read_b64 {v(T+32+2*w,2)}, {v(QR)} offset:{L_QP + w*2048}")
    A(f"s_lshl_b32 {s(S_T1)}, {s(S_H)}, 2")
    A(f"s_add_u32 {s(S_T1)}, {s(S_T1)}, {s(S_W)}")
    A(f"s_lshl_b32 {s(S_T1)}, {s(S_T1)}, 3")
    A(f"s_add_u32 {s(S_T1)}, {s(S_T1)}, {s(S_J)}")
    A(f"s_lshl_b32 {s(S_T1)}, {s(S_T1)}, 10")
    A(f"s_add_u32 {s(S_T1)}, {s(S_T1)}, {QX_OFF}")
    A(f"v_lshlrev_b32 {v(T+48)}, 4, {v(V_LANE)}")
    A(f"v_mov_b32 {v(T+41)}, {s(S_TLO)}")
    A(f"v_mov_b32 {v(T+43)}, {s(S_THI)}")
    A("s_waitcnt lgkmcnt(0)")
    A(f"v_add_f32 {v(T+32)}, {v(T+32)}, {v(T+34)}")
    A(f"v_add_f32 {v(T+33)}, {v(T+33)}, {v(T+35)}")
    A(f"v_add_f32 {v(T+36)}, {v(T+36)}, {v(T+38)}")
    A(f"v_add_f32 {v(T+37)}, {v(T+37)}, {v(T+39)}")
    A(f"v_add_f32 {v(T+40)}, {v(T+32)}, {v(T+36)}")
    A(f"v_add_f32 {v(T+42)}, {v(T+33)}, {v(T+37)}")
    A.vm(f"buffer_store_dwordx4 {v(T+40,4)}, {v(T+48)}, {s(R_WS,4)}, {s(S_T1)} offen{STF}")
    stamp()
    A.wait_vm(f1_idx[-1])
    seq = [(tau, b) for tau in range(5) for b in range(4)]
    mkA(V_A0, FX)
    for n, (tau, b) in enumerate(seq):
        cur, nxt = (V_A0, V_A1) if n % 2 == 0 else (V_A1, V_A0)
        if n + 1 < len(seq): mkA(nxt, FX + n + 1)
        else: A.nop(2)
        c = "0" if tau == 0 else a(A_F+4*b, 4)
        A(f"v_mfma_f32_16x16x32_bf16 {a(A_F+4*b,4)}, {v(cur,4)}, {a(A_F1+4*tau,4)}, {c}")
        if n % 5 == 4: k_load(1)
    FA = T + 57
    A(f"v_bfe_u32 {v(FA)}, {v(V_LANE)}, 3, 1")
    A(f"v_lshlrev_b32 {v(FA)}, 6, {v(FA)}")
    A(f"v_and_b32 {v(T+56)}, 7, {v(V_LANE)}")
    A(f"v_lshl_add_u32 {v(FA)}, {v(T+56)}, 3, {v(FA)}")
    A(f"v_and_b32 {v(T+56)}, 1, {v(V_SG)}")
    A(f"v_lshl_add_u32 {v(FA)}, {v(T+56)}, 2, {v(FA)}")
    A(f"s_lshl_b32 {s(S_T1)}, {s(S_W)}, 9")
    A(f"v_add_lshl_u32 {v(FA)}, {v(FA)}, {s(S_T1)}, 2")
    A.nop(4)
    A(f"s_mov_b64 exec, {s(S_FVAL,2)}")
    for b in range(4):
        A(f"ds_write_b128 {v(FA)}, {a(A_F+4*b,4)} offset:{L_FP + b*512}")
    A("s_mov_b64 exec, -1")
    while len(k_idx) < o["gpos"]: k_load(1)
    G = T + 44 - 44 + 0
    G = T
    A(f"s_lshl_b32 {s(S_T1)}, {s(S_H)}, 2")
    A(f"s_add_u32 {s(S_T1)}, {s(S_T1)}, {s(S_B)}")
    A(f"s_lshl_b32 {s(S_T1)}, {s(S_T1)}, 3")
    A(f"s_lshl_b32 {s(S_T2)}, {s(S_W)}, 1")
    A(f"s_add_u32 {s(S_T1)}, {s(S_T1)}, {s(S_T2)}")
    A(f"s_lshl_b32 {s(S_T1)}, {s(S_T1)}, 10")
    A(f"s_add_u32 {s(S_T2)}, {s(S_T1)}, {QX_OFF}")
    gq = []
    def qgather():
        gq.append(A.vm(f"buffer_load_dwordx4 {v(G,4)}, {v(T+48)}, {s(R_WS,4)}, {s(S_T2)} offen{LDF}"))
        gq.append(A.vm(f"buffer_load_dwordx4 {v(G+4,4)}, {v(T+48)}, {s(R_WS,4)}, {s(S_T2)} offen offset:1024{LDF}"))
    qgather()
    k_load(D)
    spin_id = [0]
    def tagchk(regs, acc, first=True):
        for n, r in enumerate(regs):
            A(f"v_xor_b32 {v(r+1)}, {s(S_TLO)}, {v(r+1)}")
            A(f"v_xor_b32 {v(r+3)}, {s(S_THI)}, {v(r+3)}")
            if n == 0 and first: A(f"v_or_b32 {v(acc)}, {v(r+1)}, {v(r+3)}")
            else: A(f"v_or3_b32 {v(acc)}, {v(acc)}, {v(r+1)}, {v(r+3)}")
        A(f"v_cmp_ne_u32 vcc, 0, {v(acc)}")
    def spin_check(check, reload_, slp=2, count_slot=None):
        i = spin_id[0]; spin_id[0] += 1
        A(f"s_mov_b32 {s(S_SPIN)}, 0")
        A.label(f"L_sp{i}")
        check()
        A.nop(5)
        A(f"s_cbranch_vccz L_spd{i}")
        A(f"s_add_u32 {s(S_SPIN)}, {s(S_SPIN)}, 1")
        A(f"s_cmp_ge_u32 {s(S_SPIN)}, {SPIN_MAX}")
        A(f"s_cbranch_scc1 L_spd{i}")
        A(f"s_sleep {slp}")
        f = A.fifo
        reload_()
        A.fifo = f
        A("s_waitcnt vmcnt(0)")
        A(f"s_branch L_sp{i}")
        A.label(f"L_spd{i}")
        if count_slot is not None and o["stamp"]:
            A(f"v_writelane_b32 {v(V_ST)}, {s(S_SPIN)}, {count_slot}")
    A.wait_vm(gq[1])
    spin_check(lambda: tagchk([G, G+4], T+8), lambda: qgather(), count_slot=14)
    A(f"v_add_f32 {v(T+10)}, {v(G)}, {v(G+4)}")
    A(f"v_add_f32 {v(T+11)}, {v(G+2)}, {v(G+6)}")
    A(f"v_lshlrev_b32 {v(T+12)}, 3, {v(V_LANE)}")
    A(f"s_lshl_b32 {s(S_T1)}, {s(S_W)}, 9")
    A(f"v_add_u32 {v(T+12)}, {s(S_T1)}, {v(T+12)}")
    A(f"ds_write_b64 {v(T+12)}, {v(T+10,2)} offset:{L_QG}")
    QR = T + 60
    A(f"v_lshlrev_b32 {v(QR)}, 5, {v(V_C)}")
    FRD = T + 61
    A(f"v_and_b32 {v(FRD)}, 31, {v(V_LANE)}")
    A(f"v_lshlrev_b32 {v(FRD)}, 3, {v(FRD)}")
    A(f"v_add_u32 {v(FRD)}, {s(S_T1)}, {v(FRD)}")
    A("s_waitcnt lgkmcnt(0)")
    A("s_barrier")
    for w in range(4):
        A(f"ds_read_b128 {v(T+8*w,4)}, {v(QR)} offset:{L_QG + w*512}")
        A(f"ds_read_b128 {v(T+8*w+4,4)}, {v(QR)} offset:{L_QG + w*512 + 16}")
    for w in range(4):
        for rp in range(2):
            A(f"ds_read_b64 {v(T+32+4*w+2*rp,2)}, {v(FRD)} offset:{L_FP + w*2048 + rp*256}")
    A(f"s_and_b32 {s(S_T1)}, {s(S_ID)}, 3")
    A(f"s_lshl_b32 {s(S_T1)}, {s(S_T1)}, 1")
    A(f"s_bfe_u32 {s(S_T3)}, {s(S_ID)}, 0x10002")
    A(f"s_add_u32 {s(S_T1)}, {s(S_T1)}, {s(S_T3)}")
    A(f"s_lshl_b32 {s(S_T1)}, {s(S_T1)}, 2")
    A(f"s_add_u32 {s(S_T1)}, {s(S_T1)}, {s(S_W)}")
    A(f"s_mul_i32 {s(S_T1)}, {s(S_T1)}, {F_ROW}")
    A(f"s_lshl_b32 {s(S_T3)}, {s(S_C2)}, 9")
    A(f"s_add_u32 {s(S_T1)}, {s(S_T1)}, {s(S_T3)}")
    A(f"s_add_u32 {s(S_T1)}, {s(S_T1)}, {F_OFF}")
    A("s_waitcnt lgkmcnt(8)")
    for e in range(8):
        A(f"v_add_f32 {v(T+e)}, {v(T+e)}, {v(T+8+e)}")
        A(f"v_add_f32 {v(T+16+e)}, {v(T+16+e)}, {v(T+24+e)}")
    for e in range(8): A(f"v_add_f32 {v(T+e)}, {v(T+e)}, {v(T+16+e)}")
    for k in range(4): A(f"v_cvt_pk_bf16_f32 {v(V_Q+k)}, {v(T+2*k)}, {v(T+2*k+1)}")
    A("s_waitcnt lgkmcnt(0)")
    for e in range(2):
        A(f"v_add_f32 {v(T+32+e)}, {v(T+32+e)}, {v(T+34+e)}")
        A(f"v_add_f32 {v(T+36+e)}, {v(T+36+e)}, {v(T+38+e)}")
        A(f"v_add_f32 {v(T+40+e)}, {v(T+40+e)}, {v(T+42+e)}")
        A(f"v_add_f32 {v(T+44+e)}, {v(T+44+e)}, {v(T+46+e)}")
        A(f"v_add_f32 {v(T+32+e)}, {v(T+32+e)}, {v(T+36+e)}")
        A(f"v_add_f32 {v(T+40+e)}, {v(T+40+e)}, {v(T+44+e)}")
    A(f"v_add_f32 {v(T+52)}, {v(T+32)}, {v(T+40)}")
    A(f"v_add_f32 {v(T+54)}, {v(T+33)}, {v(T+41)}")
    A(f"v_mov_b32 {v(T+53)}, {s(S_TLO)}")
    A(f"v_mov_b32 {v(T+55)}, {s(S_THI)}")
    A(f"s_cmp_lt_u32 {s(S_ID)}, 216")
    A("s_cbranch_scc0 L_nofpub")
    A("s_mov_b32 exec_hi, 0")
    A(f"buffer_store_dwordx4 {v(T+52,4)}, {v(T+48)}, {s(R_WS,4)}, {s(S_T1)} offen{STF}")
    A("s_mov_b32 exec_hi, -1")
    A.label("L_nofpub")
    if o["dump"] == "q":
        dump(A, [V_Q, V_Q+1, V_Q+2, V_Q+3, T+52, T+54])
    def wo_loads(tau0):
        if o["nowo"]: return
        for tau in (tau0, tau0+1):
            for u in range(5):
                A.vm(f"buffer_load_dwordx4 {a(A_W+4*(tau*5+u),4)}, {v(V_WOOFF)}, {s(R_WO,4)}, {s(S_WOOFF)} offen offset:{256*u}{NTW}")
            A(f"s_add_u32 {s(S_WOOFF)}, {s(S_WOOFF)}, {4*1280}")
    A(f"s_lshl_b32 {s(S_T1)}, {s(S_H)}, 7")
    A(f"s_lshl_b32 {s(S_T3)}, {s(S_W)}, 5")
    A(f"s_add_u32 {s(S_T1)}, {s(S_T1)}, {s(S_T3)}")
    A(f"s_mul_i32 {s(S_WOOFF)}, {s(S_T1)}, 1280")
    def call(lbl):
        A(f"s_call_b64 {s(S_RET,2)}, {lbl}")
    if o.get("trace"):
        A(f"s_mov_b32 {s(S_TR)}, 0")
        A(f"v_mov_b32 {v(T+56)}, 0")
    A(f"s_mov_b32 {s(S_T4)}, {F32_SCALE:#x}")
    def savesc(k):
        x0, x1 = V_SC+2*k, V_SC+2*k+1
        A(f"v_cvt_pk_bf16_f32 {v(T)}, {v(V_PC0)}, {v(V_PC1)}")
        A(f"v_lshlrev_b32 {v(x0)}, 16, {v(T)}")
        A(f"v_and_b32 {v(x1)}, 0xffff0000, {v(T)}")
        A(f"v_mul_f32 {v(x0)}, {s(S_T4)}, {v(x0)}")
        A(f"v_mul_f32 {v(x1)}, {s(S_T4)}, {v(x1)}")
        A(f"v_cvt_pk_bf16_f32 {v(T)}, {v(x0)}, {v(x1)}")
        A(f"v_lshlrev_b32 {v(x0)}, 16, {v(T)}")
        A(f"v_and_b32 {v(x1)}, 0xffff0000, {v(T)}")
        if k == 0: A(f"v_max_f32 {v(V_MW)}, {v(x0)}, {v(x1)}")
        else: A(f"v_max3_f32 {v(V_MW)}, {v(V_MW)}, {v(x0)}, {v(x1)}")
    stamp()
    call("L_kbody"); savesc(0)
    stamp()
    wo_loads(0)
    call("L_kbody"); savesc(1); wo_loads(2)
    call("L_kbody"); savesc(2); wo_loads(4)
    for i in range(4): A(f"s_mov_b32 {s(R_CUR+i)}, {s(R_V+i)}")
    A(f"s_mov_b32 {s(S_SOFF)}, 0")
    call("L_kbody"); savesc(3)
    stamp()
    allreduce(A, "v_max_f32", V_MW, T+8)
    for k in range(8): A(f"v_sub_f32 {v(V_SC+k)}, {v(V_SC+k)}, {v(V_MW)}")
    for k in range(8): A(f"v_mul_f32 {v(V_SC+k)}, {F32_LOG2E:#x}, {v(V_SC+k)}")
    for k in range(8): A(f"v_exp_f32 {v(V_SC+k)}, {v(V_SC+k)}")
    for i in range(4): A(f"v_mov_b32 {v(V_O+i)}, 0")
    A(f"v_add_f32 {v(V_LW)}, {v(V_SC)}, {v(V_SC+1)}")
    for k in range(2, 8): A(f"v_add_f32 {v(V_LW)}, {v(V_LW)}, {v(V_SC+k)}")
    for k in range(8): A(f"v_cvt_pk_bf16_f32 {v(V_SC+k)}, {v(V_SC+k)}, {v(V_SC+k)}")
    def setpc_(k):
        A(f"v_mov_b32 {v(V_PC0)}, {v(V_SC+2*k)}\nv_mov_b32 {v(V_PC1)}, {v(V_SC+2*k+1)}")
    setpc_(0)
    wo_loads(6)
    call("L_vbody"); setpc_(1)
    allreduce(A, "v_add_f32", V_LW, T+8)
    A(f"s_lshl_b32 {s(S_T1)}, {s(S_BH)}, 7")
    A(f"s_lshl_b32 {s(S_T3)}, {s(S_HALF)}, 2")
    A(f"s_add_u32 {s(S_T3)}, {s(S_T3)}, {s(S_W)}")
    A(f"s_lshl_b32 {s(S_T3)}, {s(S_T3)}, 4")
    A(f"s_add_u32 {s(S_T1)}, {s(S_T1)}, {s(S_T3)}")
    A(f"s_add_u32 {s(S_T1)}, {s(S_T1)}, {ST_OFF}")
    A(f"v_mov_b32 {v(T)}, {v(V_MW)}\nv_mov_b32 {v(T+1)}, {s(S_TLO)}\nv_mov_b32 {v(T+2)}, {v(V_LW)}\nv_mov_b32 {v(T+3)}, {s(S_THI)}\nv_mov_b32 {v(T+4)}, 0")
    A("s_mov_b64 exec, 1")
    A(f"buffer_store_dwordx4 {v(T,4)}, {v(T+4)}, {s(R_WS,4)}, {s(S_T1)} offen{STF}")
    A("s_mov_b64 exec, -1")
    A(f"s_lshl_b32 {s(S_T1)}, {s(S_H)}, 1")
    A(f"s_add_u32 {s(S_T1)}, {s(S_T1)}, {s(S_HALF)}")
    A(f"s_mul_i32 {s(S_T4)}, {s(S_T1)}, 27")
    A(f"s_lshl_b32 {s(S_T3)}, {s(S_W)}, 2")
    A(f"s_add_u32 {s(S_T1)}, {s(S_T4)}, {s(S_T3)}")
    A(f"s_mul_i32 {s(S_T2)}, {s(S_T1)}, 1280")
    for cp in range(2):
        for u in range(5):
            A(f"buffer_load_dwordx4 {a(A_WD+4*(cp*5+u),4)}, {v(V_WOOFF)}, {s(R_WD,4)}, {s(S_T2)} offen offset:{256*u}{NTW}")
        if cp == 0: A(f"s_add_u32 {s(S_T2)}, {s(S_T2)}, {16*1280}")
    GV = T + 60
    GP = T + 62
    G = T + 8
    GS = T + 40
    SV = T + 61
    A(f"v_lshl_add_u32 {v(GV)}, {v(V_C)}, 4, {v(V_SG)}")
    A(f"v_add_u32 {v(GV)}, {s(S_T3)}, {v(GV)}")
    A(f"v_cmp_gt_u32 {s(S_GVAL,2)}, 27, {v(GV)}")
    A(f"v_add_u32 {v(GV)}, {s(S_T4)}, {v(GV)}")
    A(f"v_and_b32 {v(GP)}, 1, {v(GV)}")
    A(f"v_lshrrev_b32 {v(GV)}, 1, {v(GV)}")
    A(f"v_lshlrev_b32 {v(GV)}, 4, {v(GV)}")
    A(f"s_mul_i32 {s(S_T1)}, {s(S_B)}, {F_ROW}")
    A(f"v_add_u32 {v(GV)}, {s(S_T1)}, {v(GV)}")
    A(f"v_mov_b32 {v(T)}, 0x7ffffff0")
    A(f"v_cndmask_b32 {v(GV)}, {v(T)}, {v(GV)}, {s(S_GVAL,2)}")
    def gather_f():
        for k in range(8):
            A(f"s_mov_b32 {s(S_T1)}, {F_OFF + k*4*F_ROW}")
            A(f"buffer_load_dwordx4 {v(G+4*k,4)}, {v(GV)}, {s(R_WS,4)}, {s(S_T1)} offen{LDF}")
    def gather_s():
        A(f"s_lshl_b32 {s(S_T1)}, {s(S_BH)}, 7")
        A(f"s_add_u32 {s(S_T1)}, {s(S_T1)}, {ST_OFF}")
        A(f"buffer_load_dwordx4 {v(GS,4)}, {v(SV)}, {s(R_WS,4)}, {s(S_T1)} offen{LDF}")
    gather_f()
    A(f"s_mul_i32 {s(S_T1)}, {s(S_ID)}, 205")
    A(f"s_lshr_b32 {s(S_C1)}, {s(S_T1)}, 13")
    A(f"s_mul_i32 {s(S_T1)}, {s(S_C1)}, 40")
    A(f"s_sub_u32 {s(S_C2)}, {s(S_ID)}, {s(S_T1)}")
    A(f"v_and_b32 {v(T)}, 7, {v(V_LANE)}")
    A(f"v_lshrrev_b32 {v(T+1)}, 5, {v(V_LANE)}")
    A(f"v_lshl_add_u32 {v(T)}, {v(T)}, 1, {v(T+1)}")
    A(f"s_lshl_b32 {s(S_T1)}, {s(S_C2)}, 4")
    A(f"s_mul_i32 {s(S_T3)}, {s(S_C1)}, 640")
    A(f"s_add_u32 {s(S_T1)}, {s(S_T1)}, {s(S_T3)}")
    A(f"v_add_lshl_u32 {v(V_F1OFF)}, {v(T)}, {s(S_T1)}, 1")
    A(f"buffer_load_ushort {v(V_CX)}, {v(V_F1OFF)}, {s(R_X,4)}, 0 offen")
    call("L_vbody"); setpc_(2)
    stamp()
    A(f"v_and_b32 {v(SV)}, 7, {v(V_LANE)}")
    A(f"v_lshlrev_b32 {v(SV)}, 4, {v(SV)}")
    A(f"v_mov_b32 {v(GS+1)}, 0")
    gather_s()
    def chk_f():
        tagchk([G+4*k for k in range(8)], T)
        A.nop(2)
        A(f"s_and_b64 vcc, vcc, {s(S_GVAL,2)}")
    def re_f():
        gather_f()
    spin_check(chk_f, re_f, count_slot=15)
    A(f"v_cmp_eq_u32 vcc, 1, {v(GP)}")
    A.nop(2)
    for k in range(8):
        A(f"v_cndmask_b32 {v(G+4*k)}, {v(G+4*k)}, {v(G+4*k+2)}, vcc")
    g_, u_, z_, t_ = T, T+1, T+2, T+3
    A(f"v_add_f32 {v(g_)}, {v(G)}, {v(G+8)}\nv_add_f32 {v(g_)}, {v(g_)}, {v(G+16)}\nv_add_f32 {v(g_)}, {v(g_)}, {v(G+24)}")
    A(f"v_add_f32 {v(u_)}, {v(G+4)}, {v(G+12)}\nv_add_f32 {v(u_)}, {v(u_)}, {v(G+20)}\nv_add_f32 {v(u_)}, {v(u_)}, {v(G+28)}")
    rbf(A, g_, t_); rbf(A, u_, t_)
    A(f"v_mul_f32 {v(z_)}, {v(g_)}, {v(g_)}")
    A(f"v_mul_f32 {v(z_)}, 0x3d372713, {v(z_)}")
    A(f"v_add_f32 {v(z_)}, 1.0, {v(z_)}")
    A(f"v_mul_f32 {v(z_)}, {v(z_)}, {v(g_)}")
    A(f"v_mul_f32 {v(z_)}, 0xc0135761, {v(z_)}")
    A(f"v_exp_f32 {v(z_)}, {v(z_)}")
    A.nop(1)
    A(f"v_add_f32 {v(z_)}, 1.0, {v(z_)}")
    A(f"v_rcp_f32 {v(z_)}, {v(z_)}")
    A.nop(1)
    A(f"v_mul_f32 {v(z_)}, {v(z_)}, {v(g_)}")
    rbf(A, z_, t_)
    A(f"v_mul_f32 {v(z_)}, {v(z_)}, {v(u_)}")
    A(f"v_cvt_pk_bf16_f32 {v(z_)}, {v(z_)}, {v(z_)}")
    A(f"v_cmp_gt_u32 vcc, 8, {v(V_C)}")
    A.nop(2)
    for t in range(4):
        A(f"v_cndmask_b32 {v(V_ML+t)}, 0, {v(V_M+t)}, vcc")
    for cp in range(2):
        dst = V_A0 if cp == 0 else V_A1
        for k in range(4):
            A(f"v_and_b32_dpp {v(dst+k)}, {v(z_)}, {v(V_ML+k)} row_newbcast:{cp} row_mask:0xf bank_mask:0xf")
    A.nop(2)
    for cp in range(2):
        dst = V_A0 if cp == 0 else V_A1
        for u in range(5):
            c = "0" if cp == 0 else a(A_Y+4*u, 4)
            A(f"v_mfma_f32_16x16x32_bf16 {a(A_Y+4*u,4)}, {v(dst,4)}, {a(A_WD+4*(cp*5+u),4)}, {c}")
    A(f"v_lshlrev_b32 {v(V_CX)}, 16, {v(V_CX)}")
    call("L_vbody"); setpc_(3)
    def chk_s():
        A(f"v_xor_b32 {v(T)}, {s(S_TLO)}, {v(GS+1)}")
        A(f"v_xor_b32 {v(T+1)}, {s(S_THI)}, {v(GS+3)}")
        A(f"v_or_b32 {v(T)}, {v(T)}, {v(T+1)}")
        A(f"v_cmp_ne_u32 vcc, 0, {v(T)}")
    spin_check(chk_s, gather_s, count_slot=14)
    m_, l_, mg = GS, GS+2, T+4
    P_OA, P_RA, P_YA, P_Y8, P_Y16, P_CV = T+44, T+45, T+46, T+47, T+48, T+49
    S_YST, S_YC = 4, 5
    A(f"v_mov_b32 {v(mg)}, {v(m_)}")
    A(f"v_and_b32 {v(P_OA)}, 1, {v(V_SG)}")
    A(f"v_lshlrev_b32 {v(P_OA)}, 2, {v(P_OA)}")
    A(f"v_max_f32_dpp {v(mg)}, {v(mg)}, {v(mg)} quad_perm:[1,0,3,2] row_mask:0xf bank_mask:0xf")
    A(f"v_lshl_add_u32 {v(P_YA)}, {v(V_C)}, 3, {v(P_OA)}")
    A(f"s_lshl_b32 {s(S_T1)}, {s(S_W)}, 7")
    A(f"v_max_f32_dpp {v(mg)}, {v(mg)}, {v(mg)} quad_perm:[2,3,0,1] row_mask:0xf bank_mask:0xf")
    A(f"v_add_lshl_u32 {v(P_OA)}, {v(P_YA)}, {s(S_T1)}, 2")
    A(f"v_and_b32 {v(P_RA)}, 7, {v(V_C)}")
    A(f"v_max_f32_dpp {v(mg)}, {v(mg)}, {v(mg)} row_half_mirror row_mask:0xf bank_mask:0xf")
    A(f"v_lshl_add_u32 {v(P_RA)}, {v(P_RA)}, 2, {v(V_SG)}")
    A(f"s_lshl_b32 {s(S_T1)}, {s(S_W)}, 5")
    A(f"v_sub_f32 {v(m_)}, {v(m_)}, {v(mg)}")
    A(f"v_add_lshl_u32 {v(P_RA)}, {v(P_RA)}, {s(S_T1)}, 2")
    A(f"v_mul_f32 {v(m_)}, {F32_LOG2E:#x}, {v(m_)}")
    A(f"v_exp_f32 {v(m_)}, {v(m_)}")
    A(f"v_lshrrev_b32 {v(T+5)}, 1, {v(V_SG)}")
    A(f"s_lshl_b32 {s(S_T1)}, {s(S_W)}, 1")
    A(f"v_mul_f32 {v(l_)}, {v(l_)}, {v(m_)}")
    A(f"v_add_u32 {v(T+5)}, {s(S_T1)}, {v(T+5)}")
    A(f"v_mul_u32_u24 {v(T+5)}, 640, {v(T+5)}")
    A(f"v_add_f32_dpp {v(l_)}, {v(l_)}, {v(l_)} quad_perm:[1,0,3,2] row_mask:0xf bank_mask:0xf")
    A(f"v_add_lshl_u32 {v(P_YA)}, {v(P_YA)}, {v(T+5)}, 2")
    A(f"v_lshlrev_b32 {v(P_Y8)}, 3, v0")
    A(f"v_add_f32_dpp {v(l_)}, {v(l_)}, {v(l_)} quad_perm:[2,3,0,1] row_mask:0xf bank_mask:0xf")
    A(f"v_lshlrev_b32 {v(P_Y16)}, 4, v0")
    A(f"v_lshrrev_b32 {v(P_CV)}, 3, {v(V_LANE)}")
    A(f"v_add_f32_dpp {v(l_)}, {v(l_)}, {v(l_)} row_half_mirror row_mask:0xf bank_mask:0xf")
    A(f"v_sub_f32 {v(V_FAC)}, {v(V_MW)}, {v(mg)}")
    A(f"v_mul_f32 {v(V_FAC)}, {F32_LOG2E:#x}, {v(V_FAC)}")
    A(f"v_exp_f32 {v(V_FAC)}, {v(V_FAC)}")
    A(f"v_rcp_f32 {v(l_)}, {v(l_)}")
    A(f"v_mul_u32_u24 {v(P_CV)}, 5120, {v(P_CV)}")
    A(f"v_mul_f32 {v(V_FAC)}, {v(V_FAC)}, {v(l_)}")
    A(f"v_and_b32 {v(T+5)}, 7, {v(V_LANE)}")
    A(f"v_lshl_add_u32 {v(P_CV)}, {v(T+5)}, 4, {v(P_CV)}")
    A(f"s_mul_i32 {s(S_YST)}, {s(S_ID)}, 5120")
    A(f"s_add_u32 {s(S_YST)}, {s(S_YST)}, {Y_OFF}")
    A(f"s_mul_i32 {s(S_YC)}, {s(S_C1)}, {64*5120}")
    A(f"s_lshl_b32 {s(S_T3)}, {s(S_C2)}, 7")
    A(f"s_add_u32 {s(S_YC)}, {s(S_YC)}, {s(S_T3)}")
    A(f"s_add_u32 {s(S_YC)}, {s(S_YC)}, {Y_OFF}")
    if o["pretouch"]:
        A(f"buffer_load_ushort {v(T+50)}, {v(V_F1OFF)}, {s(R_OUT,4)}, 0 offen")
    call("L_vdrain")
    stamp()
    A.nop(8)
    for i in range(4): A(f"v_mul_f32 {v(V_O+i)}, {v(V_O+i)}, {v(V_FAC)}")
    A("s_mov_b32 exec_hi, 0")
    A(f"ds_write_b128 {v(P_OA)}, {v(V_O,4)} offset:{L_OP}")
    A("s_mov_b32 exec_hi, -1")
    A("s_waitcnt lgkmcnt(0)")
    A("s_barrier")
    stamp()
    for w in range(4): A(f"ds_read_b32 {v(T+4+w)}, {v(P_RA)} offset:{L_OP + w*512}")
    A("s_waitcnt lgkmcnt(0)")
    A(f"v_add_f32 {v(T+4)}, {v(T+4)}, {v(T+5)}\nv_add_f32 {v(T+6)}, {v(T+6)}, {v(T+7)}\nv_add_f32 {v(T+4)}, {v(T+4)}, {v(T+6)}")
    PH, PL = T+8, T+9
    A(f"v_cvt_pk_bf16_f32 {v(PH)}, {v(T+4)}, {v(T+4)}")
    A(f"v_and_b32 {v(T+5)}, 0xffff0000, {v(PH)}")
    A(f"v_sub_f32 {v(T+5)}, {v(T+4)}, {v(T+5)}")
    A(f"v_cvt_pk_bf16_f32 {v(PL)}, {v(T+5)}, {v(T+5)}")
    A.nop(2)
    def mkY(dst, tau):
        for k in range(4):
            A(f"v_and_b32_dpp {v(dst+k)}, {v(PH)}, {v(V_M+k)} row_newbcast:{tau} row_mask:0xf bank_mask:0x3")
            A(f"v_and_b32_dpp {v(dst+k)}, {v(PL)}, {v(V_M+k)} row_newbcast:{tau} row_mask:0xf bank_mask:0xc")
    mkY(V_A0, 0)
    for tau in range(8):
        cur, nxt = (V_A0, V_A1) if tau % 2 == 0 else (V_A1, V_A0)
        if tau + 1 < 8: mkY(nxt, tau + 1)
        for u in range(5):
            A(f"v_mfma_f32_16x16x32_bf16 {a(A_Y+4*u,4)}, {v(cur,4)}, {a(A_W+4*(tau*5+u),4)}, {a(A_Y+4*u,4)}")
    A.nop(4)
    for u in range(5):
        if u == 4: A.nop(1)
        A(f"ds_write_b128 {v(P_YA)}, {a(A_Y+4*u,4)} offset:{L_YP + 512*u}")
    A("s_waitcnt lgkmcnt(0)")
    A("s_barrier")
    stamp()
    A(f"s_cmp_eq_u32 {s(S_W)}, 3")
    A("s_cbranch_scc1 L_cons")
    for k in range(8): A(f"ds_read_b64 {v(T+4+2*k,2)}, {v(P_Y8)} offset:{L_YP + 2560*k}")
    A(f"s_cmp_eq_u32 {s(S_W)}, 2")
    A("s_cbranch_scc1 L_y1")
    for k in range(8): A(f"ds_read_b64 {v(T+24+2*k,2)}, {v(P_Y8)} offset:{L_YP + 2560*k + 1536}")
    A.label("L_y1")
    def ysum(base, dst):
        for e in range(2):
            A(f"v_add_f32 {v(base+e)}, {v(base+e)}, {v(base+2+e)}")
            A(f"v_add_f32 {v(base+4+e)}, {v(base+4+e)}, {v(base+6+e)}")
            A(f"v_add_f32 {v(base+8+e)}, {v(base+8+e)}, {v(base+10+e)}")
            A(f"v_add_f32 {v(base+12+e)}, {v(base+12+e)}, {v(base+14+e)}")
        for e in range(2):
            A(f"v_add_f32 {v(base+e)}, {v(base+e)}, {v(base+4+e)}")
            A(f"v_add_f32 {v(base+8+e)}, {v(base+8+e)}, {v(base+12+e)}")
        A(f"v_add_f32 {v(dst)}, {v(base)}, {v(base+8)}")
        A(f"v_add_f32 {v(dst+2)}, {v(base+1)}, {v(base+9)}")
    YD0, YD1 = T+52, T+40
    A(f"v_mov_b32 {v(YD0+1)}, {s(S_TLO)}\nv_mov_b32 {v(YD0+3)}, {s(S_THI)}\nv_mov_b32 {v(YD1+1)}, {s(S_TLO)}\nv_mov_b32 {v(YD1+3)}, {s(S_THI)}")
    A("s_waitcnt lgkmcnt(0)")
    ysum(T+4, YD0)
    A(f"buffer_store_dwordx4 {v(YD0,4)}, {v(P_Y16)}, {s(R_WS,4)}, {s(S_YST)} offen{STF}")
    A(f"s_cmp_eq_u32 {s(S_W)}, 2")
    A("s_cbranch_scc1 L_y2")
    ysum(T+24, YD1)
    A(f"buffer_store_dwordx4 {v(YD1,4)}, {v(P_Y16)}, {s(R_WS,4)}, {s(S_YST)} offen offset:3072{STF}")
    A.label("L_y2")
    if o["stamp"]:
        A("s_waitcnt vmcnt(0)")
        stamp_out()
    A("s_endpgm")
    A.label("L_cons")
    A(f"s_cmp_lt_u32 {s(S_ID)}, 160")
    A("s_cbranch_scc0 L_end")
    YvA, YvB = V_BUF, V_BUF + 32
    def yload(Yv):
        A(f"s_mov_b32 {s(S_T1)}, {s(S_YC)}")
        for j in range(8):
            A(f"buffer_load_dwordx4 {v(Yv+4*j,4)}, {v(P_CV)}, {s(R_WS,4)}, {s(S_T1)} offen{LDF}")
            if j < 7: A(f"s_add_u32 {s(S_T1)}, {s(S_T1)}, {8*5120}")
    def ysum1(Yv, d0, d1):
        for k in (0, 8, 16, 24):
            A(f"v_add_f32 {v(Yv+k)}, {v(Yv+k)}, {v(Yv+k+4)}")
            A(f"v_add_f32 {v(Yv+k+2)}, {v(Yv+k+2)}, {v(Yv+k+6)}")
        for k in (0, 16):
            A(f"v_add_f32 {v(Yv+k)}, {v(Yv+k)}, {v(Yv+k+8)}")
            A(f"v_add_f32 {v(Yv+k+2)}, {v(Yv+k+2)}, {v(Yv+k+10)}")
        A(f"v_add_f32 {v(d0)}, {v(Yv)}, {v(Yv+16)}")
        A(f"v_add_f32 {v(d1)}, {v(Yv+2)}, {v(Yv+18)}")
    a0, a1 = T+4, T+5
    A(f"s_mov_b32 {s(S_SPIN)}, 0")
    yload(YvA)
    yload(YvB)
    A.label("L_cp")
    A("s_waitcnt vmcnt(8)")
    tagchk([YvA+4*j for j in range(8)], T+1)
    A.nop(5)
    A("s_cbranch_vccz L_cA")
    yload(YvA)
    A("s_waitcnt vmcnt(8)")
    tagchk([YvB+4*j for j in range(8)], T+1)
    A.nop(5)
    A("s_cbranch_vccz L_cB")
    yload(YvB)
    A(f"s_add_u32 {s(S_SPIN)}, {s(S_SPIN)}, 1")
    A(f"s_cmp_lt_u32 {s(S_SPIN)}, {SPIN_MAX}")
    A("s_cbranch_scc1 L_cp")
    A.label("L_cA")
    ysum1(YvA, a0, a1)
    A("s_branch L_cfin")
    A.label("L_cB")
    ysum1(YvB, a0, a1)
    A.label("L_cfin")
    if o["stamp"]: A(f"v_writelane_b32 {v(V_ST)}, {s(S_SPIN)}, 13")
    A.nop(2)
    A(f"v_permlane32_swap_b32 {v(a0)}, {v(a1)}")
    A.nop(2)
    A(f"v_add_f32 {v(a0)}, {v(a0)}, {v(a1)}")
    A(f"v_mov_b32 {v(a1)}, {v(a0)}")
    A.nop(2)
    A(f"v_permlane16_swap_b32 {v(a0)}, {v(a1)}")
    A.nop(2)
    A(f"v_add_f32 {v(a0)}, {v(a0)}, {v(a1)}")
    A.nop(2)
    A(f"v_add_f32_dpp {v(a0)}, {v(a0)}, {v(a0)} row_ror:8 row_mask:0xf bank_mask:0xf")
    A(f"v_add_f32 {v(a0)}, {v(a0)}, {v(V_CX)}")
    A(f"v_cvt_pk_bf16_f32 {v(a0)}, {v(a0)}, {v(a0)}")
    A("s_mov_b32 exec_lo, 0xff\ns_mov_b32 exec_hi, 0xff")
    A(f"buffer_store_short {v(a0)}, {v(V_F1OFF)}, {s(R_OUT,4)}, 0 offen")
    A(f"s_cmp_eq_u32 {s(S_ID)}, 0")
    A("s_cbranch_scc0 L_noep")
    A(f"v_mov_b32 {v(T+2)}, {s(S_TLO)}\nv_mov_b32 {v(T+3)}, {s(S_THI)}\nv_mov_b32 {v(T+1)}, 0")
    A(f"s_mov_b32 {s(S_T1)}, {EP_OFF}")
    A("s_mov_b64 exec, 1")
    A(f"buffer_store_dwordx2 {v(T+2,2)}, {v(T+1)}, {s(R_WS,4)}, {s(S_T1)} offen{STF}")
    A.label("L_noep")
    if o["stamp"]:
        A("s_waitcnt vmcnt(0)")
        A("s_mov_b64 exec, -1")
        stamp_out()
    A.label("L_end")
    A("s_endpgm")
    if o["align"]: A.L.append(".p2align 6")
    for _ in range(o["shift"]): A("s_nop 0")
    A.label("L_kbody")
    for i in range(32):
        n = i % 16
        b = V_BUF + 4*i
        if i % 8 == 0: trace()
        A("s_waitcnt vmcnt(31)")
        A(f"v_dot2_f32_bf16 {v(V_ACC+n)}, {v(b)}, {v(V_Q)}, 0")
        for k in range(1, 1 if o["strip"] else 4):
            A(f"v_dot2_f32_bf16 {v(V_ACC+n)}, {v(b+k)}, {v(V_Q+k)}, {v(V_ACC+n)}")
        if o["pad"]: A.nop(o["pad"])
        A(f"buffer_load_dwordx4 {v(b,4)}, {v(V_KOFF)}, {s(R_CUR,4)}, {s(S_SOFF)} offen{NTK}")
        if o["addk"]: A(f"s_addk_i32 {s(S_SOFF)}, 0x1000")
        else: A(f"s_add_u32 {s(S_SOFF)}, {s(S_SOFF)}, 4096")
        for _ in range(o["kpad"]): A("s_nop 0")
        if n == 15:
            x = V_ACC
            A.nop(2)
            for t in range(8):
                A(f"v_add_f32_dpp {v(x+t)}, {v(x+t)}, {v(x+t)} row_ror:8 row_mask:0xf bank_mask:0x3")
                A(f"v_add_f32_dpp {v(x+t)}, {v(x+t+8)}, {v(x+t+8)} row_ror:8 row_mask:0xf bank_mask:0xc")
            for t in range(4):
                A(f"v_add_f32_dpp {v(x+t)}, {v(x+t)}, {v(x+t)} row_half_mirror row_mask:0xf bank_mask:0x5")
                A(f"v_add_f32_dpp {v(x+t)}, {v(x+t+4)}, {v(x+t+4)} row_half_mirror row_mask:0xf bank_mask:0xa")
            A.nop(2)
            for t in range(4):
                A(f"v_add_f32_dpp {v(x+t)}, {v(x+t)}, {v(x+t)} quad_perm:[2,3,0,1] row_mask:0xf bank_mask:0xf")
            A(f"v_cndmask_b32 {v(x)}, {v(x)}, {v(x+2)}, {s(S_M2,2)}")
            A(f"v_cndmask_b32 {v(x+1)}, {v(x+1)}, {v(x+3)}, {s(S_M2,2)}")
            A.nop(2)
            A(f"v_add_f32_dpp {v(x)}, {v(x)}, {v(x)} quad_perm:[1,0,3,2] row_mask:0xf bank_mask:0xf")
            A(f"v_add_f32_dpp {v(x+1)}, {v(x+1)}, {v(x+1)} quad_perm:[1,0,3,2] row_mask:0xf bank_mask:0xf")
            dst = V_PC0 if i == 15 else V_PC1
            A(f"v_cndmask_b32 {v(dst)}, {v(x)}, {v(x+1)}, {s(S_M1,2)}")
    A(f"s_setpc_b64 {s(S_RET,2)}")
    for lbl, refill in (("L_vbody", True), ("L_vdrain", False)):
        if o["align"]: A.L.append(".p2align 6")
        for _ in range(o["shift"]): A("s_nop 0")
        A.label(lbl)
        for i in range(32):
            n = i % 16
            b = V_BUF + 4*i
            P = V_PC0 if i < 16 else V_PC1
            if i % 8 == 0: trace()
            for k in range(1 if o["strip"] else 4):
                A(f"v_and_b32_dpp {v(V_A0+k)}, {v(P)}, {v(V_M+k)} row_newbcast:{n} row_mask:0xf bank_mask:0xf")
            if o["pad"]: A.nop(o["pad"])
            A(f"s_waitcnt vmcnt({31 if refill else 31-i})")
            A.nop(1)
            A(f"v_mfma_f32_16x16x32_bf16 {v(V_O,4)}, {v(V_A0,4)}, {v(b,4)}, {v(V_O,4)}")
            if refill:
                A(f"buffer_load_dwordx4 {v(b,4)}, {v(V_KOFF)}, {s(R_CUR,4)}, {s(S_SOFF)} offen{NTK}")
                if o["addk"]: A(f"s_addk_i32 {s(S_SOFF)}, 0x1000")
                else: A(f"s_add_u32 {s(S_SOFF)}, {s(S_SOFF)}, 4096")
                for _ in range(o["vpad"]): A("s_nop 0")
        A(f"s_setpc_b64 {s(S_RET,2)}")
    A.L.append(f""".section .rodata,"a"
.p2align 6
.amdhsa_kernel {NAME}
  .amdhsa_next_free_vgpr 512
  .amdhsa_next_free_sgpr {NSGPR}
  .amdhsa_accum_offset 256
  .amdhsa_group_segment_fixed_size 0
  .amdhsa_kernarg_size 96
  .amdhsa_user_sgpr_count 2
  .amdhsa_user_sgpr_kernarg_segment_ptr 1
  .amdhsa_system_sgpr_workgroup_id_x 1
  .amdhsa_float_denorm_mode_32 3
  .amdhsa_float_denorm_mode_16_64 3
.end_amdhsa_kernel""")
    return A.text()

def dump(A, regs):
    A("s_waitcnt vmcnt(0) lgkmcnt(0)")
    A(f"s_mov_b32 s60, s{P_WS}\ns_mov_b32 s61, s{P_WS+1}\ns_mov_b32 s62, 0x10000000\ns_mov_b32 s63, 0x20000")
    A(f"s_lshl_b32 s{S_T1}, s{S_ID}, 10")
    A(f"s_add_u32 s{S_T1}, s{S_T1}, {DBG_OFF}")
    A(f"v_lshlrev_b32 v79, 2, v0")
    for k, r in enumerate(regs):
        A(f"buffer_store_dword v{r}, v79, s[60:63], s{S_T1} offen")
        A(f"s_add_u32 s{S_T1}, s{S_T1}, {65536*4}")
    A("s_waitcnt vmcnt(0)")
    A("s_endpgm")

if __name__ == "__main__":
    import json
    opts = json.loads(sys.argv[2]) if len(sys.argv) > 2 else {}
    open(sys.argv[1], "w").write(gen(opts))
```

```python
import sys

NAME = "parallel_sum__gqa_block_cached__geglu_ffn__decode_kernel"

class Asm:
    def __init__(self):
        self.L = []
        self.fifo = 0
    def __call__(self, s):
        for line in s.split("\n"):
            t = line.strip()
            if not t: continue
            self.L.append(t if t.endswith(":") else "  " + t)
    def label(self, s): self.L.append(s + ":")
    def nop(self, n):
        while n > 0:
            k = min(n, 16)
            self.L.append(f"  s_nop {k-1}")
            n -= k
    def vm(self, s):
        self(s)
        self.fifo += 1
        return self.fifo - 1
    def wait_vm(self, idx, extra=""):
        n = min(self.fifo - 1 - idx, 63)
        self(f"s_waitcnt vmcnt({n}){extra}")
    def text(self): return "\n".join(self.L) + "\n"


HEADER = """; Fused decode step:  out = x + attention(LN(x)) @ wo + geglu_ffn(LN(x)),  one launch, 256 workgroups x 4 waves.
;      gate/up projection; partial sums go to the workspace as tagged granules {{v0, tag_lo, v1, tag_hi}}.
"""

def v(i, n=1): return f"v{i}" if n == 1 else f"v[{i}:{i+n-1}]"
def a(i, n=1): return f"a{i}" if n == 1 else f"a[{i}:{i+n-1}]"
def s(i, n=1): return f"s{i}" if n == 1 else f"s[{i}:{i+n-1}]"

QX_OFF  = 0
QX_SIZE = 32*4*8*1024
F_OFF   = QX_OFF + QX_SIZE
F_ROW   = 864*16
F_SIZE  = 4*4*F_ROW
ST_OFF  = F_OFF + F_SIZE
ST_SIZE = 128*128
Y_OFF   = ST_OFF + ST_SIZE
Y_SIZE  = 256*5120
EP_OFF  = Y_OFF + Y_SIZE
WS_SIZE = EP_OFF + 256
DBG_OFF = 4 << 20
assert WS_SIZE <= DBG_OFF

L_XN = 0
L_QP = 10240
L_FP = 18432
L_QG = 26624
L_OP = 28672
L_YP = 30720
LDS_SIZE = 51200

P_X, P_K, P_V, P_WQ, P_WO, P_BX, P_WG, P_WU, P_WD, P_OUT, P_DBG, P_WS = [4+2*i for i in range(12)]
R_K, R_V, R_CUR, R_WQ, R_WO, R_F1, R_WD, R_WS, R_X, R_OUT = [28+4*i for i in range(10)]
S_TLO, S_THI = 68, 69
S_GVAL = 70
S_W, S_H, S_HALF, S_B, S_BH, S_SOFF, S_T0, S_T1, S_T2, S_T3 = range(72, 82)
S_RET = 82
S_M2 = 84
S_M1 = 86
S_FVAL = 88
S_SPIN = 90
S_ID = 91
S_WOOFF = 92
S_C1 = 93
S_C2 = 94
S_T4 = 95
S_HASF = 96
S_FROW = 97
S_U = 95
S_EX = 96
S_J = 3
NSGPR = 100
S_TR = 15

V_TID, V_LANE, V_C, V_SG, V_KOFF, V_WQOFF, V_WOOFF, V_F1OFF, V_FV0, V_CX, V_FAC, V_MW, V_LW, V_FV1, V_PC0, V_PC1 = range(16)
V_T = 16
V_O = 80
V_A0 = 84
V_A1 = 88
V_ML = 92
V_M = 96
V_Q = 100
V_SC = 104
V_ACC = 112
V_BUF = 128
D = 32

A_W = 0
A_F1 = 20
A_WD = 160
A_Y = 200
A_F = 220
A_Q = 236

SPIN_MAX = 100000
F32_INV640 = 0x3acccccd
F32_EPS = 0x3727c5ac
F32_SCALE = 0x3db504f3
F32_LOG2E = 0x3fb8aa3b
TAG_HI_INC = 0x61c88647

def xrow(A, op, x, tmp):
    A(f"v_mov_b32 {v(tmp)}, {v(x)}")
    A.nop(2)
    A(f"v_permlane16_swap_b32 {v(x)}, {v(tmp)}")
    A.nop(2)
    A(f"{op} {v(x)}, {v(x)}, {v(tmp)}")
    A(f"v_mov_b32 {v(tmp)}, {v(x)}")
    A.nop(2)
    A(f"v_permlane32_swap_b32 {v(x)}, {v(tmp)}")
    A.nop(2)
    A(f"{op} {v(x)}, {v(x)}, {v(tmp)}")

def allreduce(A, op, x, tmp):
    for r in (8, 4, 2, 1):
        A.nop(2)
        A(f"{op}_dpp {v(x)}, {v(x)}, {v(x)} row_ror:{r} row_mask:0xf bank_mask:0xf")
    xrow(A, op, x, tmp)

def allreduce2(A, op, x, y, tx, ty):
    A.nop(1)
    for r in (8, 4, 2, 1):
        A(f"{op}_dpp {v(x)}, {v(x)}, {v(x)} row_ror:{r} row_mask:0xf bank_mask:0xf")
        A(f"{op}_dpp {v(y)}, {v(y)}, {v(y)} row_ror:{r} row_mask:0xf bank_mask:0xf")
        A.nop(1)
    A(f"v_mov_b32 {v(tx)}, {v(x)}")
    A(f"v_mov_b32 {v(ty)}, {v(y)}")
    A.nop(1)
    A(f"v_permlane16_swap_b32 {v(x)}, {v(tx)}")
    A(f"v_permlane16_swap_b32 {v(y)}, {v(ty)}")
    A.nop(1)
    A(f"{op} {v(x)}, {v(x)}, {v(tx)}")
    A(f"{op} {v(y)}, {v(y)}, {v(ty)}")
    A(f"v_mov_b32 {v(tx)}, {v(x)}")
    A(f"v_mov_b32 {v(ty)}, {v(y)}")
    A.nop(1)
    A(f"v_permlane32_swap_b32 {v(x)}, {v(tx)}")
    A(f"v_permlane32_swap_b32 {v(y)}, {v(ty)}")
    A.nop(1)
    A(f"{op} {v(x)}, {v(x)}, {v(tx)}")
    A(f"{op} {v(y)}, {v(y)}, {v(ty)}")

def rbf(A, x, tmp):
    A(f"v_cvt_pk_bf16_f32 {v(tmp)}, {v(x)}, {v(x)}")
    A(f"v_and_b32 {v(x)}, 0xffff0000, {v(tmp)}")

def gen(opts=None):
    o = dict(nt_kv=" nt", nt_w="", dump=None, stamp=False, stf=" sc1", ldf=" sc1", ysleep=2, gpos=16,
             pretouch=True, warm_tail=False, nowo=False, wo_first=False, thr=None, pad=0, strip=False, map=0, align=True, addk=False, kpad=0, vpad=0, shift=0, nt_once=None, fcnt=(28,0,31,0,28,0,21,0))
    if opts: o.update(opts)
    NTK = o["nt_kv"]; NTW = o["nt_w"]; STF = o["stf"]; LDF = o["ldf"]
    NT1 = o["nt_once"] if o["nt_once"] is not None else NTW
    A = Asm()
    T = V_T
    V_ST = T + 58
    nst = [0]
    def stamp(slot=None):
        if not o["stamp"]: return
        A("s_memrealtime s[98:99]")
        A("s_waitcnt lgkmcnt(0)")
        A(f"v_writelane_b32 {v(V_ST)}, s98, {nst[0] if slot is None else slot}")
        if slot is None: nst[0] += 1
    def trace():
        if not o.get("trace"): return
        A("s_memrealtime s[98:99]")
        A("s_waitcnt lgkmcnt(0)")
        A(f"s_mov_b32 m0, {s(S_TR)}")
        A("s_nop 0")
        A(f"v_writelane_b32 {v(T+56)}, s98, m0")
        A(f"s_add_u32 {s(S_TR)}, {s(S_TR)}, 1")
    def stamp_out():
        if not o["stamp"]: return
        if o.get("trace"):
            A(f"s_lshl_b32 {s(S_T1)}, {s(S_ID)}, 2")
            A(f"s_add_u32 {s(S_T1)}, {s(S_T1)}, {s(S_W)}")
            A(f"s_lshl_b32 {s(S_T1)}, {s(S_T1)}, 8")
            A(f"s_add_u32 {s(S_T1)}, {s(S_T1)}, {DBG_OFF + 65536}")
            A(f"s_mov_b32 s60, s{P_WS}\ns_mov_b32 s61, s{P_WS+1}\ns_mov_b32 s62, 0x10000000\ns_mov_b32 s63, 0x20000")
            A("s_mov_b64 exec, -1")
            A(f"v_lshlrev_b32 {v(T+57)}, 2, {v(V_LANE)}")
            A(f"buffer_store_dword {v(T+56)}, {v(T+57)}, s[60:63], {s(S_T1)} offen")
        stamp(10)
        A(f"s_lshl_b32 {s(S_T1)}, {s(S_ID)}, 2")
        A(f"s_add_u32 {s(S_T1)}, {s(S_T1)}, {s(S_W)}")
        A(f"s_lshl_b32 {s(S_T1)}, {s(S_T1)}, 6")
        A(f"s_add_u32 {s(S_T1)}, {s(S_T1)}, {DBG_OFF}")
        A(f"s_mov_b32 s60, s{P_WS}\ns_mov_b32 s61, s{P_WS+1}\ns_mov_b32 s62, 0x10000000\ns_mov_b32 s63, 0x20000")
        A("s_mov_b64 exec, 0xffff")
        A(f"v_lshlrev_b32 {v(T+57)}, 2, {v(V_LANE)}")
        A(f"buffer_store_dword {v(V_ST)}, {v(T+57)}, s[60:63], {s(S_T1)} offen")
    A.L.append(f"; @launch grid=(256,1,1) block=(256,1,1) lds={LDS_SIZE}")
    A.L.append(HEADER.format().rstrip("\n"))
    A.L.append('.amdgcn_target "amdgcn-amd-amdhsa--gfx950"')
    A.L.append(".text")
    A.L.append(f".globl {NAME}")
    A.L.append(".p2align 8")
    A.L.append(f".type {NAME},@function")
    A.label(NAME)
    A("s_cmp_ge_u32 s2, 256")
    A("s_cbranch_scc1 L_end")
    A("s_load_dwordx16 s[4:19], s[0:1], 0")
    A("s_load_dwordx8 s[20:27], s[0:1], 64")
    if o["stamp"]:
        A(f"v_mov_b32 {v(V_ST)}, 0")
        A("s_memrealtime s[98:99]")
    A(f"v_and_b32 {v(V_LANE)}, 63, v0")
    A(f"v_lshrrev_b32 {v(T)}, 6, v0")
    A(f"s_mov_b32 {s(S_ID)}, s2")
    A(f"v_readfirstlane_b32 {s(S_W)}, {v(T)}")
    if o["map"] == 0:
        A(f"s_and_b32 {s(S_H)}, s2, 7")
        A(f"s_lshl_b32 {s(S_H)}, {s(S_H)}, 2")
        A(f"s_bfe_u32 {s(S_HALF)}, s2, 0x20004")
        A(f"s_or_b32 {s(S_H)}, {s(S_H)}, {s(S_HALF)}")
        A(f"s_bfe_u32 {s(S_HALF)}, s2, 0x10003")
    elif o["map"] == 1:
        A(f"s_and_b32 {s(S_H)}, s2, 31")
        A(f"s_bfe_u32 {s(S_HALF)}, s2, 0x10005")
    elif o["map"] == 2:
        A(f"s_and_b32 {s(S_H)}, s2, 7")
        A(f"s_lshl_b32 {s(S_H)}, {s(S_H)}, 2")
        A(f"s_bfe_u32 {s(S_HALF)}, s2, 0x20003")
        A(f"s_or_b32 {s(S_H)}, {s(S_H)}, {s(S_HALF)}")
        A(f"s_bfe_u32 {s(S_HALF)}, s2, 0x10005")
    A(f"s_lshr_b32 {s(S_B)}, s2, 6")
    A(f"s_lshl_b32 {s(S_J)}, {s(S_B)}, 1")
    A(f"s_or_b32 {s(S_J)}, {s(S_J)}, {s(S_HALF)}")
    A(f"s_lshl_b32 {s(S_T0)}, {s(S_B)}, 5")
    A(f"s_add_u32 {s(S_BH)}, {s(S_T0)}, {s(S_H)}")
    A(f"v_and_b32 {v(V_C)}, 15, {v(V_LANE)}")
    A(f"v_lshrrev_b32 {v(V_SG)}, 4, {v(V_LANE)}")
    A(f"v_lshlrev_b32 {v(T+1)}, 4, {v(V_LANE)}")
    A(f"v_lshlrev_b32 {v(T+2)}, 4, {v(V_C)}")
    A(f"s_lshl_b32 {s(S_T0)}, {s(S_BH)}, 20")
    A(f"s_lshl_b32 {s(S_T1)}, {s(S_HALF)}, 19")
    A(f"s_add_u32 {s(S_T0)}, {s(S_T0)}, {s(S_T1)}")
    A(f"s_lshl_b32 {s(S_T1)}, {s(S_W)}, 10")
    A(f"v_add_u32 {v(V_KOFF)}, {s(S_T1)}, {v(T+1)}")
    A(f"v_lshl_add_u32 {v(V_WQOFF)}, {v(V_SG)}, 13, {v(T+2)}")
    A(f"v_lshlrev_b32 {v(T+8)}, 2, {v(V_LANE)}")
    A(f"s_mul_i32 {s(S_T2)}, {s(S_J)}, 80")
    A(f"s_mul_i32 {s(S_T3)}, {s(S_W)}, 20")
    A(f"s_add_u32 {s(S_C1)}, {s(S_T2)}, {s(S_T3)}")
    A(f"s_lshl_b32 {s(S_T2)}, {s(S_C1)}, 13")
    A(f"s_lshl_b32 {s(S_T3)}, {s(S_H)}, 8")
    A(f"s_add_u32 {s(S_T2)}, {s(S_T2)}, {s(S_T3)}")
    A(f"s_mul_i32 {s(S_T1)}, {s(S_W)}, 1280")
    A("s_waitcnt lgkmcnt(0)")
    if o["stamp"]:
        A(f"v_writelane_b32 {v(V_ST)}, s98, 0"); nst[0] = 1
    A(f"s_mov_b32 {s(S_SPIN)}, {EP_OFF}")
    A(f"s_load_dwordx2 {s(S_TLO,2)}, {s(P_WS,2)}, {s(S_SPIN)}")
    def srd(r, p, size, add=None):
        if add is None:
            A(f"s_mov_b32 {s(r)}, {s(p)}")
            A(f"s_mov_b32 {s(r+1)}, {s(p+1)}")
        else:
            A(f"s_add_u32 {s(r)}, {s(p)}, {s(add)}")
            A(f"s_addc_u32 {s(r+1)}, {s(p+1)}, 0")
        A(f"s_mov_b32 {s(r+2)}, {size}")
        A(f"s_mov_b32 {s(r+3)}, 0x20000")
    srd(R_X, P_X, 5120)
    VX = T + 10
    xl = []
    for k in range(5):
        xl.append(A.vm(f"buffer_load_dword {v(VX+k)}, {v(T+8)}, {s(R_X,4)}, {s(S_T1)} offen offset:{256*k}"))
    srd(R_WQ, P_WQ, 640*8192)
    wq_idx = []
    for t in range(5):
        wq_idx.append(A.vm(f"buffer_load_dwordx4 {a(A_W+4*t,4)}, {v(V_WQOFF)}, {s(R_WQ,4)}, {s(S_T2)} offen{NT1}"))
        if t < 4: A(f"s_add_u32 {s(S_T2)}, {s(S_T2)}, 32768")
    srd(R_CUR, P_K, 1 << 19, add=S_T0)
    A(f"s_mov_b32 {s(S_SOFF)}, 0")
    k_idx = []
    def k_load(n=1):
        for _ in range(n):
            if len(k_idx) >= D: return
            i = len(k_idx)
            k_idx.append(A.vm(f"buffer_load_dwordx4 {v(V_BUF+4*i,4)}, {v(V_KOFF)}, {s(R_CUR,4)}, {s(S_SOFF)} offen{NTK}"))
            A(f"s_add_u32 {s(S_SOFF)}, {s(S_SOFF)}, 4096")
    k_load(2)
    srd(R_V, P_V, 1 << 19, add=S_T0)
    srd(R_WS, P_WS, WS_SIZE)
    srd(R_WO, P_WO, 4096*1280)
    srd(R_WD, P_WD, 1728*1280)
    srd(R_OUT, P_OUT, 5120)

    cnt = list(o["fcnt"]); assert sum(cnt) == 108 and max(cnt) <= 32
    A(f"s_and_b32 {s(S_T1)}, {s(S_ID)}, 7")
    A(f"s_lshr_b32 {s(S_T3)}, {s(S_ID)}, 3")
    A(f"s_mov_b32 {s(S_HASF)}, 0")
    A(f"s_mov_b32 {s(S_U)}, 0")
    off = 0
    for x in range(8):
        if cnt[x]:
            A(f"s_cmp_eq_u32 {s(S_T1)}, {x}")
            A(f"s_cselect_b32 {s(S_HASF)}, {cnt[x]}, {s(S_HASF)}")
            A(f"s_cselect_b32 {s(S_U)}, {off}, {s(S_U)}")
            off += cnt[x]
    A(f"s_add_u32 {s(S_U)}, {s(S_U)}, {s(S_T3)}")
    A(f"s_cmp_lt_u32 {s(S_T3)}, {s(S_HASF)}")
    A(f"s_cselect_b32 {s(S_HASF)}, 1, 0")
    A(f"s_bitcmp1_b32 {s(S_U)}, 1")
    A(f"s_cselect_b32 {s(R_F1)}, {s(P_WU)}, {s(P_WG)}")
    A(f"s_cselect_b32 {s(R_F1+1)}, {s(P_WU+1)}, {s(P_WG+1)}")
    A(f"s_mov_b32 {s(R_F1+2)}, {640*3456}")
    A(f"s_mov_b32 {s(R_F1+3)}, 0x20000")
    A(f"v_mul_u32_u24 {v(V_WOOFF)}, 1280, {v(V_SG)}")
    A(f"v_add_u32 {v(V_WOOFF)}, {v(V_WOOFF)}, {v(T+2)}")
    t0, t1, t2 = T+16, T+17, T+18
    A(f"v_bfe_u32 {v(t0)}, {v(V_LANE)}, 3, 1")
    A(f"v_lshl_add_u32 {v(t0)}, {v(V_SG)}, 1, {v(t0)}")
    A(f"v_mul_u32_u24 {v(V_F1OFF)}, 3456, {v(t0)}")
    A(f"v_and_b32 {v(t1)}, 7, {v(V_LANE)}")
    A(f"v_lshl_add_u32 {v(V_F1OFF)}, {v(t1)}, 4, {v(V_F1OFF)}")
    A(f"s_and_b32 {s(S_T1)}, {s(S_U)}, 1")
    A(f"s_mul_i32 {s(S_T1)}, {s(S_T1)}, 320")
    A(f"s_mul_i32 {s(S_T3)}, {s(S_W)}, 80")
    A(f"s_add_u32 {s(S_FROW)}, {s(S_T1)}, {s(S_T3)}")
    A(f"s_mul_i32 {s(S_T1)}, {s(S_FROW)}, 3456")
    A(f"s_lshr_b32 {s(S_C2)}, {s(S_U)}, 2")
    A(f"s_lshl_b32 {s(S_T3)}, {s(S_C2)}, 7")
    A(f"s_add_u32 {s(S_T0)}, {s(S_T1)}, {s(S_T3)}")
    def f1_loads():
        for tau in range(10):
            A(f"buffer_load_dwordx4 {a(A_F1+4*tau,4)}, {v(V_F1OFF)}, {s(R_F1,4)}, {s(S_T0)} offen{NT1}")
            if tau < 9: A(f"s_add_u32 {s(S_T0)}, {s(S_T0)}, {8*3456}")
    A(f"v_and_b32 {v(t0)}, 1, {v(V_LANE)}")
    A(f"v_cmp_eq_u32 vcc, 1, {v(t0)}")
    A(f"v_mov_b32 {v(t1)}, 0xffff")
    A(f"v_mov_b32 {v(t2)}, 0xffff0000")
    A(f"v_cndmask_b32 {v(t1)}, {v(t1)}, {v(t2)}, vcc")
    A(f"v_bfe_u32 {v(t0)}, {v(V_LANE)}, 1, 2")
    for t in range(4):
        A(f"v_cmp_eq_u32 vcc, {t}, {v(t0)}")
        A.nop(2)
        A(f"v_cndmask_b32 {v(V_M+t)}, 0, {v(t1)}, vcc")
    A(f"s_mov_b32 {s(S_M2)}, 0xcccccccc\ns_mov_b32 {s(S_M2+1)}, 0xcccccccc")
    A(f"s_mov_b32 {s(S_M1)}, 0xaaaaaaaa\ns_mov_b32 {s(S_M1+1)}, 0xaaaaaaaa")
    A(f"s_mov_b32 {s(S_FVAL)}, 0x00ff00ff\ns_mov_b32 {s(S_FVAL+1)}, 0xff00ff00")
    XA, XQ, XF = T+50, T+51, T+52
    A(f"v_and_b32 {v(XA)}, 1, {v(V_LANE)}")
    A(f"v_mul_u32_u24 {v(XA)}, 320, {v(XA)}")
    A(f"v_lshrrev_b32 {v(t0)}, 1, {v(V_LANE)}")
    A(f"v_add_lshl_u32 {v(XA)}, {v(XA)}, {v(t0)}, 2")
    A(f"s_mul_i32 {s(S_T1)}, {s(S_W)}, 2560")
    A(f"v_add_u32 {v(XA)}, {s(S_T1)}, {v(XA)}")
    A(f"v_bfe_u32 {v(XQ)}, {v(V_LANE)}, 3, 1")
    A(f"v_mul_u32_u24 {v(XQ)}, 2560, {v(XQ)}")
    A(f"v_mul_u32_u24 {v(t0)}, 640, {v(V_SG)}")
    A(f"v_add3_u32 {v(XQ)}, {v(XQ)}, {v(t0)}, {s(S_C1)}")
    A(f"v_bfe_u32 {v(t0)}, {v(V_LANE)}, 3, 1")
    A(f"v_lshl_add_u32 {v(t0)}, {v(V_SG)}, 1, {v(t0)}")
    A(f"v_and_b32 {v(t0)}, 3, {v(t0)}")
    A(f"v_mul_u32_u24 {v(XF)}, 160, {v(t0)}")
    A(f"v_lshrrev_b32 {v(t0)}, 1, {v(V_SG)}")
    A(f"v_add_u32 {v(XF)}, {v(XF)}, {v(t0)}")
    A(f"v_lshlrev_b32 {v(XF)}, 2, {v(XF)}")
    A(f"v_add_u32 {v(XF)}, {s(S_FROW)}, {v(XF)}")
    A.wait_vm(xl[-1])
    F = T + 20
    DV = T + 32
    S1, S2, TM1, TM2, MEAN, MB, RS, SD = T+44, T+45, T+46, T+47, T+48, T+49, T+53, T+54
    for k in range(5):
        A(f"v_lshlrev_b32 {v(F+2*k)}, 16, {v(VX+k)}")
        A(f"v_and_b32 {v(F+2*k+1)}, 0xffff0000, {v(VX+k)}")
    A(f"v_readfirstlane_b32 {s(S_T1)}, {v(F)}")
    k_load(2)
    for k in range(10): A(f"v_subrev_f32 {v(DV+k)}, {s(S_T1)}, {v(F+k)}")
    A(f"v_add_f32 {v(S1)}, {v(DV)}, {v(DV+1)}")
    A(f"v_mul_f32 {v(S2)}, {v(DV)}, {v(DV)}")
    A(f"v_fmac_f32 {v(S2)}, {v(DV+1)}, {v(DV+1)}")
    for k in range(2, 10):
        A(f"v_add_f32 {v(S1)}, {v(S1)}, {v(DV+k)}")
        A(f"v_fmac_f32 {v(S2)}, {v(DV+k)}, {v(DV+k)}")
    k_load(2)
    allreduce2(A, "v_add_f32", S1, S2, TM1, TM2)
    k_load(2)
    A(f"v_mul_f32 {v(S1)}, {F32_INV640:#x}, {v(S1)}")
    A(f"v_mul_f32 {v(S2)}, {F32_INV640:#x}, {v(S2)}")
    A(f"v_add_f32 {v(MB)}, {s(S_T1)}, {v(S1)}")
    A(f"v_fma_f32 {v(S2)}, -{v(S1)}, {v(S1)}, {v(S2)}")
    rbf(A, MB, TM1)
    rbf(A, S2, TM2)
    A(f"v_add_f32 {v(S2)}, {F32_EPS:#x}, {v(S2)}")
    rbf(A, S2, TM2)
    A(f"v_sqrt_f32 {v(SD)}, {v(S2)}")
    A.nop(1)
    rbf(A, SD, TM2)
    A(f"v_rcp_f32 {v(RS)}, {v(SD)}")
    k_load(2)
    for k in range(10): A(f"v_sub_f32 {v(DV+k)}, {v(F+k)}, {v(MB)}")
    for k in range(5): A(f"v_cvt_pk_bf16_f32 {v(VX+k)}, {v(DV+2*k)}, {v(DV+2*k+1)}")
    for k in range(5):
        A(f"v_lshlrev_b32 {v(DV+2*k)}, 16, {v(VX+k)}")
        A(f"v_and_b32 {v(DV+2*k+1)}, 0xffff0000, {v(VX+k)}")
    for k in range(10): A(f"v_mul_f32 {v(DV+k)}, {v(DV+k)}, {v(RS)}")
    for k in range(10): A(f"v_cvt_pk_bf16_f32 {v(DV+k)}, {v(DV+k)}, {v(DV+k)}")
    for k in range(5):
        A(f"ds_write_b32 {v(XA)}, {v(DV+2*k)} offset:{L_XN + 128*k}")
        A(f"ds_write_b32 {v(XA)}, {v(DV+2*k+1)} offset:{L_XN + 128*k + 640}")
    k_load(2)
    A("s_waitcnt lgkmcnt(0)")
    A(f"s_add_u32 {s(S_TLO)}, {s(S_TLO)}, 1")
    A(f"s_add_u32 {s(S_THI)}, {s(S_THI)}, {TAG_HI_INC:#x}")
    A("s_barrier")
    stamp()
    XV = T
    for beta in range(2):
        for tau in range(5):
            A(f"ds_read_b32 {v(XV+5*beta+tau)}, {v(XQ)} offset:{L_XN + beta*5120 + 4*tau}")
    FX = T + 10
    QA = T + 55
    A(f"v_lshrrev_b32 {v(QA)}, 1, {v(V_SG)}")
    A(f"s_lshl_b32 {s(S_T1)}, {s(S_W)}, 2")
    A(f"v_add_u32 {v(QA)}, {s(S_T1)}, {v(QA)}")
    A(f"v_lshlrev_b32 {v(QA)}, 7, {v(QA)}")
    A(f"v_lshl_add_u32 {v(QA)}, {v(V_C)}, 3, {v(QA)}")
    A(f"v_and_b32 {v(T+56)}, 1, {v(V_SG)}")
    A(f"v_lshl_add_u32 {v(QA)}, {v(T+56)}, 2, {v(QA)}")
    A(f"v_lshlrev_b32 {v(QA)}, 2, {v(QA)}")
    def mkA(dst, src, masks=V_M):
        for k in range(4): A(f"v_and_b32 {v(dst+k)}, {v(src)}, {v(masks+k)}")
    A.wait_vm(wq_idx[-1], " lgkmcnt(0)")
    seq = [(beta, tau) for tau in range(5) for beta in range(2)]
    mkA(V_A0, XV + 5*seq[0][0] + seq[0][1])
    for n, (beta, tau) in enumerate(seq):
        cur, nxt = (V_A0, V_A1) if n % 2 == 0 else (V_A1, V_A0)
        if n + 1 < len(seq): mkA(nxt, XV + 5*seq[n+1][0] + seq[n+1][1])
        else: A.nop(2)
        c = "0" if tau == 0 else a(A_Q+4*beta, 4)
        A(f"v_mfma_f32_16x16x32_bf16 {a(A_Q+4*beta,4)}, {v(cur,4)}, {a(A_W+4*tau,4)}, {c}")
    A(f"s_cmp_eq_u32 {s(S_HASF)}, 1")
    A("s_cbranch_scc0 L_nof1")
    f1_loads()
    A.label("L_nof1")
    f1_mark = A.fifo - 1
    A.nop(8)
    for beta in range(2):
        A(f"ds_write_b128 {v(QA)}, {a(A_Q+4*beta,4)} offset:{L_QP + beta*1024}")
    QR = T + 56
    A(f"v_lshlrev_b32 {v(QR)}, 3, {v(V_LANE)}")
    A(f"s_lshl_b32 {s(S_T1)}, {s(S_W)}, 9")
    A(f"v_add_u32 {v(QR)}, {s(S_T1)}, {v(QR)}")
    A("s_waitcnt lgkmcnt(0)")
    A("s_barrier")
    for w in range(4):
        A(f"ds_read_b64 {v(T+32+2*w,2)}, {v(QR)} offset:{L_QP + w*2048}")
    A(f"s_lshl_b32 {s(S_T1)}, {s(S_H)}, 2")
    A(f"s_add_u32 {s(S_T1)}, {s(S_T1)}, {s(S_W)}")
    A(f"s_lshl_b32 {s(S_T1)}, {s(S_T1)}, 3")
    A(f"s_add_u32 {s(S_T1)}, {s(S_T1)}, {s(S_J)}")
    A(f"s_lshl_b32 {s(S_T1)}, {s(S_T1)}, 10")
    A(f"s_add_u32 {s(S_T1)}, {s(S_T1)}, {QX_OFF}")
    A(f"v_lshlrev_b32 {v(T+48)}, 4, {v(V_LANE)}")
    A(f"v_mov_b32 {v(T+41)}, {s(S_TLO)}")
    A(f"v_mov_b32 {v(T+43)}, {s(S_THI)}")
    A("s_waitcnt lgkmcnt(0)")
    A(f"v_add_f32 {v(T+32)}, {v(T+32)}, {v(T+34)}")
    A(f"v_add_f32 {v(T+33)}, {v(T+33)}, {v(T+35)}")
    A(f"v_add_f32 {v(T+36)}, {v(T+36)}, {v(T+38)}")
    A(f"v_add_f32 {v(T+37)}, {v(T+37)}, {v(T+39)}")
    A(f"v_add_f32 {v(T+40)}, {v(T+32)}, {v(T+36)}")
    A(f"v_add_f32 {v(T+42)}, {v(T+33)}, {v(T+37)}")
    A.vm(f"buffer_store_dwordx4 {v(T+40,4)}, {v(T+48)}, {s(R_WS,4)}, {s(S_T1)} offen{STF}")
    stamp()
    k_load(2)
    A(f"s_cmp_eq_u32 {s(S_HASF)}, 1")
    A("s_cbranch_scc0 L_nof2")
    FA = T + 57
    for part in range(2):
        for tau in range(5):
            for b in range(4):
                A(f"ds_read_b32 {v(FX+4*tau+b)}, {v(XF)} offset:{L_XN + b*2560 + (5*part+tau)*8}")
        if part == 0:
            A(f"v_bfe_u32 {v(FA)}, {v(V_LANE)}, 3, 1")
            A(f"v_lshlrev_b32 {v(FA)}, 6, {v(FA)}")
            A(f"v_and_b32 {v(T+56)}, 7, {v(V_LANE)}")
            A(f"v_lshl_add_u32 {v(FA)}, {v(T+56)}, 3, {v(FA)}")
            A(f"v_and_b32 {v(T+56)}, 1, {v(V_SG)}")
            A(f"v_lshl_add_u32 {v(FA)}, {v(T+56)}, 2, {v(FA)}")
            A(f"s_lshl_b32 {s(S_T1)}, {s(S_W)}, 9")
            A(f"v_add_lshl_u32 {v(FA)}, {v(FA)}, {s(S_T1)}, 2")
            A.wait_vm(f1_mark, " lgkmcnt(0)")
        else:
            A("s_waitcnt lgkmcnt(0)")
        seq = [(tau, b) for tau in range(5) for b in range(4)]
        mkA(V_A0, FX)
        for n, (tau, b) in enumerate(seq):
            cur, nxt = (V_A0, V_A1) if n % 2 == 0 else (V_A1, V_A0)
            if n + 1 < len(seq): mkA(nxt, FX + n + 1)
            else: A.nop(2)
            c = "0" if (part == 0 and tau == 0) else a(A_F+4*b, 4)
            A(f"v_mfma_f32_16x16x32_bf16 {a(A_F+4*b,4)}, {v(cur,4)}, {a(A_F1+4*(5*part+tau),4)}, {c}")
    A.nop(8)
    A(f"s_mov_b64 exec, {s(S_FVAL,2)}")
    for b in range(4):
        A(f"ds_write_b128 {v(FA)}, {a(A_F+4*b,4)} offset:{L_FP + b*512}")
    A("s_mov_b64 exec, -1")
    A.label("L_nof2")
    while len(k_idx) < o["gpos"]: k_load(1)
    G = T + 44 - 44 + 0
    G = T
    A(f"s_lshl_b32 {s(S_T1)}, {s(S_H)}, 2")
    A(f"s_add_u32 {s(S_T1)}, {s(S_T1)}, {s(S_B)}")
    A(f"s_lshl_b32 {s(S_T1)}, {s(S_T1)}, 3")
    A(f"s_lshl_b32 {s(S_T2)}, {s(S_W)}, 1")
    A(f"s_add_u32 {s(S_T1)}, {s(S_T1)}, {s(S_T2)}")
    A(f"s_lshl_b32 {s(S_T1)}, {s(S_T1)}, 10")
    A(f"s_add_u32 {s(S_T2)}, {s(S_T1)}, {QX_OFF}")
    gq = []
    def qgather():
        gq.append(A.vm(f"buffer_load_dwordx4 {v(G,4)}, {v(T+48)}, {s(R_WS,4)}, {s(S_T2)} offen{LDF}"))
        gq.append(A.vm(f"buffer_load_dwordx4 {v(G+4,4)}, {v(T+48)}, {s(R_WS,4)}, {s(S_T2)} offen offset:1024{LDF}"))
    qgather()
    k_load(D)
    spin_id = [0]
    def tagchk(regs, acc, first=True):
        for n, r in enumerate(regs):
            A(f"v_xor_b32 {v(r+1)}, {s(S_TLO)}, {v(r+1)}")
            A(f"v_xor_b32 {v(r+3)}, {s(S_THI)}, {v(r+3)}")
            if n == 0 and first: A(f"v_or_b32 {v(acc)}, {v(r+1)}, {v(r+3)}")
            else: A(f"v_or3_b32 {v(acc)}, {v(acc)}, {v(r+1)}, {v(r+3)}")
        A(f"v_cmp_ne_u32 vcc, 0, {v(acc)}")
    def spin_check(check, reload_, slp=2, count_slot=None):
        i = spin_id[0]; spin_id[0] += 1
        A(f"s_mov_b32 {s(S_SPIN)}, 0")
        A.label(f"L_sp{i}")
        check()
        A.nop(5)
        A(f"s_cbranch_vccz L_spd{i}")
        A(f"s_add_u32 {s(S_SPIN)}, {s(S_SPIN)}, 1")
        A(f"s_cmp_ge_u32 {s(S_SPIN)}, {SPIN_MAX}")
        A(f"s_cbranch_scc1 L_spd{i}")
        A(f"s_sleep {slp}")
        f = A.fifo
        reload_()
        A.fifo = f
        A("s_waitcnt vmcnt(0)")
        A(f"s_branch L_sp{i}")
        A.label(f"L_spd{i}")
        if count_slot is not None and o["stamp"]:
            A(f"v_writelane_b32 {v(V_ST)}, {s(S_SPIN)}, {count_slot}")
    A.wait_vm(gq[1])
    spin_check(lambda: tagchk([G, G+4], T+8), lambda: qgather(), count_slot=14)
    A(f"v_add_f32 {v(T+10)}, {v(G)}, {v(G+4)}")
    A(f"v_add_f32 {v(T+11)}, {v(G+2)}, {v(G+6)}")
    A(f"v_lshlrev_b32 {v(T+12)}, 3, {v(V_LANE)}")
    A(f"s_lshl_b32 {s(S_T1)}, {s(S_W)}, 9")
    A(f"v_add_u32 {v(T+12)}, {s(S_T1)}, {v(T+12)}")
    A(f"ds_write_b64 {v(T+12)}, {v(T+10,2)} offset:{L_QG}")
    QR = T + 60
    A(f"v_lshlrev_b32 {v(QR)}, 5, {v(V_C)}")
    FRD = T + 61
    A(f"v_and_b32 {v(FRD)}, 31, {v(V_LANE)}")
    A(f"v_lshlrev_b32 {v(FRD)}, 3, {v(FRD)}")
    A(f"v_add_u32 {v(FRD)}, {s(S_T1)}, {v(FRD)}")
    A("s_waitcnt lgkmcnt(0)")
    A("s_barrier")
    for w in range(4):
        A(f"ds_read_b128 {v(T+8*w,4)}, {v(QR)} offset:{L_QG + w*512}")
        A(f"ds_read_b128 {v(T+8*w+4,4)}, {v(QR)} offset:{L_QG + w*512 + 16}")
    for w in range(4):
        for rp in range(2):
            A(f"ds_read_b64 {v(T+32+4*w+2*rp,2)}, {v(FRD)} offset:{L_FP + w*2048 + rp*256}")
    A(f"s_and_b32 {s(S_T1)}, {s(S_U)}, 1")
    A(f"s_lshl_b32 {s(S_T1)}, {s(S_T1)}, 1")
    A(f"s_bfe_u32 {s(S_T3)}, {s(S_U)}, 0x10001")
    A(f"s_add_u32 {s(S_T1)}, {s(S_T1)}, {s(S_T3)}")
    A(f"s_lshl_b32 {s(S_T1)}, {s(S_T1)}, 2")
    A(f"s_add_u32 {s(S_T1)}, {s(S_T1)}, {s(S_W)}")
    A(f"s_mul_i32 {s(S_T1)}, {s(S_T1)}, {F_ROW}")
    A(f"s_lshl_b32 {s(S_T3)}, {s(S_C2)}, 9")
    A(f"s_add_u32 {s(S_T1)}, {s(S_T1)}, {s(S_T3)}")
    A(f"s_add_u32 {s(S_T1)}, {s(S_T1)}, {F_OFF}")
    A("s_waitcnt lgkmcnt(8)")
    for e in range(8):
        A(f"v_add_f32 {v(T+e)}, {v(T+e)}, {v(T+8+e)}")
        A(f"v_add_f32 {v(T+16+e)}, {v(T+16+e)}, {v(T+24+e)}")
    for e in range(8): A(f"v_add_f32 {v(T+e)}, {v(T+e)}, {v(T+16+e)}")
    for k in range(4): A(f"v_cvt_pk_bf16_f32 {v(V_Q+k)}, {v(T+2*k)}, {v(T+2*k+1)}")
    A("s_waitcnt lgkmcnt(0)")
    for e in range(2):
        A(f"v_add_f32 {v(T+32+e)}, {v(T+32+e)}, {v(T+34+e)}")
        A(f"v_add_f32 {v(T+36+e)}, {v(T+36+e)}, {v(T+38+e)}")
        A(f"v_add_f32 {v(T+40+e)}, {v(T+40+e)}, {v(T+42+e)}")
        A(f"v_add_f32 {v(T+44+e)}, {v(T+44+e)}, {v(T+46+e)}")
        A(f"v_add_f32 {v(T+32+e)}, {v(T+32+e)}, {v(T+36+e)}")
        A(f"v_add_f32 {v(T+40+e)}, {v(T+40+e)}, {v(T+44+e)}")
    A(f"v_add_f32 {v(T+52)}, {v(T+32)}, {v(T+40)}")
    A(f"v_add_f32 {v(T+54)}, {v(T+33)}, {v(T+41)}")
    A(f"v_mov_b32 {v(T+53)}, {s(S_TLO)}")
    A(f"v_mov_b32 {v(T+55)}, {s(S_THI)}")
    A(f"s_cmp_eq_u32 {s(S_HASF)}, 1")
    A("s_cbranch_scc0 L_nofpub")
    A("s_mov_b32 exec_hi, 0")
    A(f"buffer_store_dwordx4 {v(T+52,4)}, {v(T+48)}, {s(R_WS,4)}, {s(S_T1)} offen{STF}")
    A("s_mov_b32 exec_hi, -1")
    A.label("L_nofpub")
    if o["dump"] == "q":
        dump(A, [V_Q, V_Q+1, V_Q+2, V_Q+3, T+52, T+54])
    def wo_loads(tau0):
        if o["nowo"]: return
        for tau in (tau0, tau0+1):
            for u in range(5):
                A.vm(f"buffer_load_dwordx4 {a(A_W+4*(tau*5+u),4)}, {v(V_WOOFF)}, {s(R_WO,4)}, {s(S_WOOFF)} offen offset:{256*u}{NTW}")
            A(f"s_add_u32 {s(S_WOOFF)}, {s(S_WOOFF)}, {4*1280}")
    A(f"s_lshl_b32 {s(S_T1)}, {s(S_H)}, 7")
    A(f"s_lshl_b32 {s(S_T3)}, {s(S_W)}, 5")
    A(f"s_add_u32 {s(S_T1)}, {s(S_T1)}, {s(S_T3)}")
    A(f"s_mul_i32 {s(S_WOOFF)}, {s(S_T1)}, 1280")
    def call(lbl):
        A(f"s_call_b64 {s(S_RET,2)}, {lbl}")
    if o.get("trace"):
        A(f"s_mov_b32 {s(S_TR)}, 0")
        A(f"v_mov_b32 {v(T+56)}, 0")
    A(f"s_mov_b32 {s(S_T4)}, {F32_SCALE:#x}")
    def savesc(k):
        x0, x1 = V_SC+2*k, V_SC+2*k+1
        A(f"v_cvt_pk_bf16_f32 {v(T)}, {v(V_PC0)}, {v(V_PC1)}")
        A(f"v_lshlrev_b32 {v(x0)}, 16, {v(T)}")
        A(f"v_and_b32 {v(x1)}, 0xffff0000, {v(T)}")
        A(f"v_mul_f32 {v(x0)}, {s(S_T4)}, {v(x0)}")
        A(f"v_mul_f32 {v(x1)}, {s(S_T4)}, {v(x1)}")
        A(f"v_cvt_pk_bf16_f32 {v(T)}, {v(x0)}, {v(x1)}")
        A(f"v_lshlrev_b32 {v(x0)}, 16, {v(T)}")
        A(f"v_and_b32 {v(x1)}, 0xffff0000, {v(T)}")
        if k == 0: A(f"v_max_f32 {v(V_MW)}, {v(x0)}, {v(x1)}")
        else: A(f"v_max3_f32 {v(V_MW)}, {v(V_MW)}, {v(x0)}, {v(x1)}")
    stamp()
    call("L_kbody"); savesc(0)
    stamp()
    wo_loads(0)
    call("L_kbody"); savesc(1); wo_loads(2)
    call("L_kbody"); savesc(2); wo_loads(4)
    for i in range(4): A(f"s_mov_b32 {s(R_CUR+i)}, {s(R_V+i)}")
    A(f"s_mov_b32 {s(S_SOFF)}, 0")
    call("L_kbody"); savesc(3)
    stamp()
    allreduce(A, "v_max_f32", V_MW, T+8)
    for k in range(8): A(f"v_sub_f32 {v(V_SC+k)}, {v(V_SC+k)}, {v(V_MW)}")
    for k in range(8): A(f"v_mul_f32 {v(V_SC+k)}, {F32_LOG2E:#x}, {v(V_SC+k)}")
    for k in range(8): A(f"v_exp_f32 {v(V_SC+k)}, {v(V_SC+k)}")
    for i in range(4): A(f"v_mov_b32 {v(V_O+i)}, 0")
    A(f"v_add_f32 {v(V_LW)}, {v(V_SC)}, {v(V_SC+1)}")
    for k in range(2, 8): A(f"v_add_f32 {v(V_LW)}, {v(V_LW)}, {v(V_SC+k)}")
    for k in range(8): A(f"v_cvt_pk_bf16_f32 {v(V_SC+k)}, {v(V_SC+k)}, {v(V_SC+k)}")
    def setpc_(k):
        A(f"v_mov_b32 {v(V_PC0)}, {v(V_SC+2*k)}\nv_mov_b32 {v(V_PC1)}, {v(V_SC+2*k+1)}")
    setpc_(0)
    wo_loads(6)
    call("L_vbody"); setpc_(1)
    allreduce(A, "v_add_f32", V_LW, T+8)
    A(f"s_lshl_b32 {s(S_T1)}, {s(S_BH)}, 7")
    A(f"s_lshl_b32 {s(S_T3)}, {s(S_HALF)}, 2")
    A(f"s_add_u32 {s(S_T3)}, {s(S_T3)}, {s(S_W)}")
    A(f"s_lshl_b32 {s(S_T3)}, {s(S_T3)}, 4")
    A(f"s_add_u32 {s(S_T1)}, {s(S_T1)}, {s(S_T3)}")
    A(f"s_add_u32 {s(S_T1)}, {s(S_T1)}, {ST_OFF}")
    A(f"v_mov_b32 {v(T)}, {v(V_MW)}\nv_mov_b32 {v(T+1)}, {s(S_TLO)}\nv_mov_b32 {v(T+2)}, {v(V_LW)}\nv_mov_b32 {v(T+3)}, {s(S_THI)}\nv_mov_b32 {v(T+4)}, 0")
    A("s_mov_b64 exec, 1")
    A(f"buffer_store_dwordx4 {v(T,4)}, {v(T+4)}, {s(R_WS,4)}, {s(S_T1)} offen{STF}")
    A("s_mov_b64 exec, -1")
    A(f"s_lshl_b32 {s(S_T1)}, {s(S_H)}, 1")
    A(f"s_add_u32 {s(S_T1)}, {s(S_T1)}, {s(S_HALF)}")
    A(f"s_mul_i32 {s(S_T4)}, {s(S_T1)}, 27")
    A(f"s_lshl_b32 {s(S_T3)}, {s(S_W)}, 2")
    A(f"s_add_u32 {s(S_T1)}, {s(S_T4)}, {s(S_T3)}")
    A(f"s_mul_i32 {s(S_T2)}, {s(S_T1)}, 1280")
    for cp in range(2):
        for u in range(5):
            A(f"buffer_load_dwordx4 {a(A_WD+4*(cp*5+u),4)}, {v(V_WOOFF)}, {s(R_WD,4)}, {s(S_T2)} offen offset:{256*u}{NTW}")
        if cp == 0: A(f"s_add_u32 {s(S_T2)}, {s(S_T2)}, {16*1280}")
    GV = T + 60
    GP = T + 62
    G = T + 8
    GS = T + 40
    SV = T + 61
    A(f"v_lshl_add_u32 {v(GV)}, {v(V_C)}, 4, {v(V_SG)}")
    A(f"v_add_u32 {v(GV)}, {s(S_T3)}, {v(GV)}")
    A(f"v_cmp_gt_u32 {s(S_GVAL,2)}, 27, {v(GV)}")
    A(f"v_add_u32 {v(GV)}, {s(S_T4)}, {v(GV)}")
    A(f"v_and_b32 {v(GP)}, 1, {v(GV)}")
    A(f"v_lshrrev_b32 {v(GV)}, 1, {v(GV)}")
    A(f"v_lshlrev_b32 {v(GV)}, 4, {v(GV)}")
    A(f"s_mul_i32 {s(S_T1)}, {s(S_B)}, {F_ROW}")
    A(f"v_add_u32 {v(GV)}, {s(S_T1)}, {v(GV)}")
    A(f"v_mov_b32 {v(T)}, 0x7ffffff0")
    A(f"v_cndmask_b32 {v(GV)}, {v(T)}, {v(GV)}, {s(S_GVAL,2)}")
    def gather_f():
        for k in range(4):
            A(f"s_mov_b32 {s(S_T1)}, {F_OFF + k*4*F_ROW}")
            A(f"buffer_load_dwordx4 {v(G+4*k,4)}, {v(GV)}, {s(R_WS,4)}, {s(S_T1)} offen{LDF}")
    def gather_s():
        A(f"s_lshl_b32 {s(S_T1)}, {s(S_BH)}, 7")
        A(f"s_add_u32 {s(S_T1)}, {s(S_T1)}, {ST_OFF}")
        A(f"buffer_load_dwordx4 {v(GS,4)}, {v(SV)}, {s(R_WS,4)}, {s(S_T1)} offen{LDF}")
    gather_f()
    A(f"s_mul_i32 {s(S_T1)}, {s(S_ID)}, 205")
    A(f"s_lshr_b32 {s(S_C1)}, {s(S_T1)}, 13")
    A(f"s_mul_i32 {s(S_T1)}, {s(S_C1)}, 40")
    A(f"s_sub_u32 {s(S_C2)}, {s(S_ID)}, {s(S_T1)}")
    A(f"v_and_b32 {v(T)}, 7, {v(V_LANE)}")
    A(f"v_lshrrev_b32 {v(T+1)}, 5, {v(V_LANE)}")
    A(f"v_lshl_add_u32 {v(T)}, {v(T)}, 1, {v(T+1)}")
    A(f"s_lshl_b32 {s(S_T1)}, {s(S_C2)}, 4")
    A(f"s_mul_i32 {s(S_T3)}, {s(S_C1)}, 640")
    A(f"s_add_u32 {s(S_T1)}, {s(S_T1)}, {s(S_T3)}")
    A(f"v_add_lshl_u32 {v(V_F1OFF)}, {v(T)}, {s(S_T1)}, 1")
    A(f"buffer_load_ushort {v(V_CX)}, {v(V_F1OFF)}, {s(R_X,4)}, 0 offen")
    call("L_vbody"); setpc_(2)
    stamp()
    A(f"v_and_b32 {v(SV)}, 7, {v(V_LANE)}")
    A(f"v_lshlrev_b32 {v(SV)}, 4, {v(SV)}")
    A(f"v_mov_b32 {v(GS+1)}, 0")
    gather_s()
    def chk_f():
        tagchk([G+4*k for k in range(4)], T)
        A.nop(2)
        A(f"s_and_b64 vcc, vcc, {s(S_GVAL,2)}")
    def re_f():
        gather_f()
    spin_check(chk_f, re_f, count_slot=15)
    A(f"v_cmp_eq_u32 vcc, 1, {v(GP)}")
    A.nop(2)
    for k in range(4):
        A(f"v_cndmask_b32 {v(G+4*k)}, {v(G+4*k)}, {v(G+4*k+2)}, vcc")
    g_, u_, z_, t_ = T, T+1, T+2, T+3
    A(f"v_add_f32 {v(g_)}, {v(G)}, {v(G+8)}")
    A(f"v_add_f32 {v(u_)}, {v(G+4)}, {v(G+12)}")
    rbf(A, g_, t_); rbf(A, u_, t_)
    A(f"v_mul_f32 {v(z_)}, {v(g_)}, {v(g_)}")
    A(f"v_mul_f32 {v(z_)}, 0x3d372713, {v(z_)}")
    A(f"v_add_f32 {v(z_)}, 1.0, {v(z_)}")
    A(f"v_mul_f32 {v(z_)}, {v(z_)}, {v(g_)}")
    A(f"v_mul_f32 {v(z_)}, 0xc0135761, {v(z_)}")
    A(f"v_exp_f32 {v(z_)}, {v(z_)}")
    A.nop(1)
    A(f"v_add_f32 {v(z_)}, 1.0, {v(z_)}")
    A(f"v_rcp_f32 {v(z_)}, {v(z_)}")
    A.nop(1)
    A(f"v_mul_f32 {v(z_)}, {v(z_)}, {v(g_)}")
    rbf(A, z_, t_)
    A(f"v_mul_f32 {v(z_)}, {v(z_)}, {v(u_)}")
    A(f"v_cvt_pk_bf16_f32 {v(z_)}, {v(z_)}, {v(z_)}")
    A(f"v_cmp_gt_u32 vcc, 8, {v(V_C)}")
    A.nop(2)
    for t in range(4):
        A(f"v_cndmask_b32 {v(V_ML+t)}, 0, {v(V_M+t)}, vcc")
    for cp in range(2):
        dst = V_A0 if cp == 0 else V_A1
        for k in range(4):
            A(f"v_and_b32_dpp {v(dst+k)}, {v(z_)}, {v(V_ML+k)} row_newbcast:{cp} row_mask:0xf bank_mask:0xf")
    A.nop(2)
    for cp in range(2):
        dst = V_A0 if cp == 0 else V_A1
        for u in range(5):
            c = "0" if cp == 0 else a(A_Y+4*u, 4)
            A(f"v_mfma_f32_16x16x32_bf16 {a(A_Y+4*u,4)}, {v(dst,4)}, {a(A_WD+4*(cp*5+u),4)}, {c}")
    A(f"v_lshlrev_b32 {v(V_CX)}, 16, {v(V_CX)}")
    call("L_vbody"); setpc_(3)
    def chk_s():
        A(f"v_xor_b32 {v(T)}, {s(S_TLO)}, {v(GS+1)}")
        A(f"v_xor_b32 {v(T+1)}, {s(S_THI)}, {v(GS+3)}")
        A(f"v_or_b32 {v(T)}, {v(T)}, {v(T+1)}")
        A(f"v_cmp_ne_u32 vcc, 0, {v(T)}")
    spin_check(chk_s, gather_s, count_slot=14)
    m_, l_, mg = GS, GS+2, T+4
    P_OA, P_RA, P_YA, P_Y8, P_Y16, P_CV = T+44, T+45, T+46, T+47, T+48, T+49
    S_YST, S_YC = 4, 5
    A(f"v_mov_b32 {v(mg)}, {v(m_)}")
    A(f"v_and_b32 {v(P_OA)}, 1, {v(V_SG)}")
    A(f"v_lshlrev_b32 {v(P_OA)}, 2, {v(P_OA)}")
    A(f"v_max_f32_dpp {v(mg)}, {v(mg)}, {v(mg)} quad_perm:[1,0,3,2] row_mask:0xf bank_mask:0xf")
    A(f"v_lshl_add_u32 {v(P_YA)}, {v(V_C)}, 3, {v(P_OA)}")
    A(f"s_lshl_b32 {s(S_T1)}, {s(S_W)}, 7")
    A(f"v_max_f32_dpp {v(mg)}, {v(mg)}, {v(mg)} quad_perm:[2,3,0,1] row_mask:0xf bank_mask:0xf")
    A(f"v_add_lshl_u32 {v(P_OA)}, {v(P_YA)}, {s(S_T1)}, 2")
    A(f"v_and_b32 {v(P_RA)}, 7, {v(V_C)}")
    A(f"v_max_f32_dpp {v(mg)}, {v(mg)}, {v(mg)} row_half_mirror row_mask:0xf bank_mask:0xf")
    A(f"v_lshl_add_u32 {v(P_RA)}, {v(P_RA)}, 2, {v(V_SG)}")
    A(f"s_lshl_b32 {s(S_T1)}, {s(S_W)}, 5")
    A(f"v_sub_f32 {v(m_)}, {v(m_)}, {v(mg)}")
    A(f"v_add_lshl_u32 {v(P_RA)}, {v(P_RA)}, {s(S_T1)}, 2")
    A(f"v_mul_f32 {v(m_)}, {F32_LOG2E:#x}, {v(m_)}")
    A(f"v_exp_f32 {v(m_)}, {v(m_)}")
    A(f"v_lshrrev_b32 {v(T+5)}, 1, {v(V_SG)}")
    A(f"s_lshl_b32 {s(S_T1)}, {s(S_W)}, 1")
    A(f"v_mul_f32 {v(l_)}, {v(l_)}, {v(m_)}")
    A(f"v_add_u32 {v(T+5)}, {s(S_T1)}, {v(T+5)}")
    A(f"v_mul_u32_u24 {v(T+5)}, 640, {v(T+5)}")
    A(f"v_add_f32_dpp {v(l_)}, {v(l_)}, {v(l_)} quad_perm:[1,0,3,2] row_mask:0xf bank_mask:0xf")
    A(f"v_add_lshl_u32 {v(P_YA)}, {v(P_YA)}, {v(T+5)}, 2")
    A(f"v_lshlrev_b32 {v(P_Y8)}, 3, v0")
    A(f"v_add_f32_dpp {v(l_)}, {v(l_)}, {v(l_)} quad_perm:[2,3,0,1] row_mask:0xf bank_mask:0xf")
    A(f"v_lshlrev_b32 {v(P_Y16)}, 4, v0")
    A(f"v_lshrrev_b32 {v(P_CV)}, 3, {v(V_LANE)}")
    A(f"v_add_f32_dpp {v(l_)}, {v(l_)}, {v(l_)} row_half_mirror row_mask:0xf bank_mask:0xf")
    A(f"v_sub_f32 {v(V_FAC)}, {v(V_MW)}, {v(mg)}")
    A(f"v_mul_f32 {v(V_FAC)}, {F32_LOG2E:#x}, {v(V_FAC)}")
    A(f"v_exp_f32 {v(V_FAC)}, {v(V_FAC)}")
    A(f"v_rcp_f32 {v(l_)}, {v(l_)}")
    A(f"v_mul_u32_u24 {v(P_CV)}, 5120, {v(P_CV)}")
    A(f"v_mul_f32 {v(V_FAC)}, {v(V_FAC)}, {v(l_)}")
    A(f"v_and_b32 {v(T+5)}, 7, {v(V_LANE)}")
    A(f"v_lshl_add_u32 {v(P_CV)}, {v(T+5)}, 4, {v(P_CV)}")
    A(f"s_mul_i32 {s(S_YST)}, {s(S_ID)}, 5120")
    A(f"s_add_u32 {s(S_YST)}, {s(S_YST)}, {Y_OFF}")
    A(f"s_mul_i32 {s(S_YC)}, {s(S_C1)}, {64*5120}")
    A(f"s_lshl_b32 {s(S_T3)}, {s(S_C2)}, 7")
    A(f"s_add_u32 {s(S_YC)}, {s(S_YC)}, {s(S_T3)}")
    A(f"s_add_u32 {s(S_YC)}, {s(S_YC)}, {Y_OFF}")
    if o["pretouch"]:
        A(f"buffer_load_ushort {v(T+50)}, {v(V_F1OFF)}, {s(R_OUT,4)}, 0 offen")
    call("L_vdrain")
    stamp()
    A.nop(8)
    for i in range(4): A(f"v_mul_f32 {v(V_O+i)}, {v(V_O+i)}, {v(V_FAC)}")
    A("s_mov_b32 exec_hi, 0")
    A(f"ds_write_b128 {v(P_OA)}, {v(V_O,4)} offset:{L_OP}")
    A("s_mov_b32 exec_hi, -1")
    A("s_waitcnt lgkmcnt(0)")
    A("s_barrier")
    stamp()
    for w in range(4): A(f"ds_read_b32 {v(T+4+w)}, {v(P_RA)} offset:{L_OP + w*512}")
    A("s_waitcnt lgkmcnt(0)")
    A(f"v_add_f32 {v(T+4)}, {v(T+4)}, {v(T+5)}\nv_add_f32 {v(T+6)}, {v(T+6)}, {v(T+7)}\nv_add_f32 {v(T+4)}, {v(T+4)}, {v(T+6)}")
    PH, PL = T+8, T+9
    A(f"v_cvt_pk_bf16_f32 {v(PH)}, {v(T+4)}, {v(T+4)}")
    A(f"v_and_b32 {v(T+5)}, 0xffff0000, {v(PH)}")
    A(f"v_sub_f32 {v(T+5)}, {v(T+4)}, {v(T+5)}")
    A(f"v_cvt_pk_bf16_f32 {v(PL)}, {v(T+5)}, {v(T+5)}")
    A.nop(2)
    def mkY(dst, tau):
        for k in range(4):
            A(f"v_and_b32_dpp {v(dst+k)}, {v(PH)}, {v(V_M+k)} row_newbcast:{tau} row_mask:0xf bank_mask:0x3")
            A(f"v_and_b32_dpp {v(dst+k)}, {v(PL)}, {v(V_M+k)} row_newbcast:{tau} row_mask:0xf bank_mask:0xc")
    mkY(V_A0, 0)
    for tau in range(8):
        cur, nxt = (V_A0, V_A1) if tau % 2 == 0 else (V_A1, V_A0)
        if tau + 1 < 8: mkY(nxt, tau + 1)
        for u in range(5):
            A(f"v_mfma_f32_16x16x32_bf16 {a(A_Y+4*u,4)}, {v(cur,4)}, {a(A_W+4*(tau*5+u),4)}, {a(A_Y+4*u,4)}")
    A.nop(4)
    for u in range(5):
        if u == 4: A.nop(1)
        A(f"ds_write_b128 {v(P_YA)}, {a(A_Y+4*u,4)} offset:{L_YP + 512*u}")
    A("s_waitcnt lgkmcnt(0)")
    A("s_barrier")
    stamp()
    A(f"s_cmp_eq_u32 {s(S_W)}, 3")
    A("s_cbranch_scc1 L_cons")
    for k in range(8): A(f"ds_read_b64 {v(T+4+2*k,2)}, {v(P_Y8)} offset:{L_YP + 2560*k}")
    A(f"s_cmp_eq_u32 {s(S_W)}, 2")
    A("s_cbranch_scc1 L_y1")
    for k in range(8): A(f"ds_read_b64 {v(T+24+2*k,2)}, {v(P_Y8)} offset:{L_YP + 2560*k + 1536}")
    A.label("L_y1")
    def ysum(base, dst):
        for e in range(2):
            A(f"v_add_f32 {v(base+e)}, {v(base+e)}, {v(base+2+e)}")
            A(f"v_add_f32 {v(base+4+e)}, {v(base+4+e)}, {v(base+6+e)}")
            A(f"v_add_f32 {v(base+8+e)}, {v(base+8+e)}, {v(base+10+e)}")
            A(f"v_add_f32 {v(base+12+e)}, {v(base+12+e)}, {v(base+14+e)}")
        for e in range(2):
            A(f"v_add_f32 {v(base+e)}, {v(base+e)}, {v(base+4+e)}")
            A(f"v_add_f32 {v(base+8+e)}, {v(base+8+e)}, {v(base+12+e)}")
        A(f"v_add_f32 {v(dst)}, {v(base)}, {v(base+8)}")
        A(f"v_add_f32 {v(dst+2)}, {v(base+1)}, {v(base+9)}")
    YD0, YD1 = T+52, T+40
    A(f"v_mov_b32 {v(YD0+1)}, {s(S_TLO)}\nv_mov_b32 {v(YD0+3)}, {s(S_THI)}\nv_mov_b32 {v(YD1+1)}, {s(S_TLO)}\nv_mov_b32 {v(YD1+3)}, {s(S_THI)}")
    A("s_waitcnt lgkmcnt(0)")
    ysum(T+4, YD0)
    A(f"buffer_store_dwordx4 {v(YD0,4)}, {v(P_Y16)}, {s(R_WS,4)}, {s(S_YST)} offen{STF}")
    A(f"s_cmp_eq_u32 {s(S_W)}, 2")
    A("s_cbranch_scc1 L_y2")
    ysum(T+24, YD1)
    A(f"buffer_store_dwordx4 {v(YD1,4)}, {v(P_Y16)}, {s(R_WS,4)}, {s(S_YST)} offen offset:3072{STF}")
    A.label("L_y2")
    if o["stamp"]:
        A("s_waitcnt vmcnt(0)")
        stamp_out()
    A("s_endpgm")
    A.label("L_cons")
    A(f"s_cmp_lt_u32 {s(S_ID)}, 160")
    A("s_cbranch_scc0 L_end")
    YvA, YvB = V_BUF, V_BUF + 32
    def yload(Yv):
        A(f"s_mov_b32 {s(S_T1)}, {s(S_YC)}")
        for j in range(8):
            A(f"buffer_load_dwordx4 {v(Yv+4*j,4)}, {v(P_CV)}, {s(R_WS,4)}, {s(S_T1)} offen{LDF}")
            if j < 7: A(f"s_add_u32 {s(S_T1)}, {s(S_T1)}, {8*5120}")
    def ysum1(Yv, d0, d1):
        for k in (0, 8, 16, 24):
            A(f"v_add_f32 {v(Yv+k)}, {v(Yv+k)}, {v(Yv+k+4)}")
            A(f"v_add_f32 {v(Yv+k+2)}, {v(Yv+k+2)}, {v(Yv+k+6)}")
        for k in (0, 16):
            A(f"v_add_f32 {v(Yv+k)}, {v(Yv+k)}, {v(Yv+k+8)}")
            A(f"v_add_f32 {v(Yv+k+2)}, {v(Yv+k+2)}, {v(Yv+k+10)}")
        A(f"v_add_f32 {v(d0)}, {v(Yv)}, {v(Yv+16)}")
        A(f"v_add_f32 {v(d1)}, {v(Yv+2)}, {v(Yv+18)}")
    a0, a1 = T+4, T+5
    A(f"s_mov_b32 {s(S_SPIN)}, 0")
    yload(YvA)
    yload(YvB)
    A.label("L_cp")
    A("s_waitcnt vmcnt(8)")
    tagchk([YvA+4*j for j in range(8)], T+1)
    A.nop(5)
    A("s_cbranch_vccz L_cA")
    yload(YvA)
    A("s_waitcnt vmcnt(8)")
    tagchk([YvB+4*j for j in range(8)], T+1)
    A.nop(5)
    A("s_cbranch_vccz L_cB")
    yload(YvB)
    A(f"s_add_u32 {s(S_SPIN)}, {s(S_SPIN)}, 1")
    A(f"s_cmp_lt_u32 {s(S_SPIN)}, {SPIN_MAX}")
    A("s_cbranch_scc1 L_cp")
    A.label("L_cA")
    ysum1(YvA, a0, a1)
    A("s_branch L_cfin")
    A.label("L_cB")
    ysum1(YvB, a0, a1)
    A.label("L_cfin")
    if o["stamp"]: A(f"v_writelane_b32 {v(V_ST)}, {s(S_SPIN)}, 13")
    A.nop(2)
    A(f"v_permlane32_swap_b32 {v(a0)}, {v(a1)}")
    A.nop(2)
    A(f"v_add_f32 {v(a0)}, {v(a0)}, {v(a1)}")
    A(f"v_mov_b32 {v(a1)}, {v(a0)}")
    A.nop(2)
    A(f"v_permlane16_swap_b32 {v(a0)}, {v(a1)}")
    A.nop(2)
    A(f"v_add_f32 {v(a0)}, {v(a0)}, {v(a1)}")
    A.nop(2)
    A(f"v_add_f32_dpp {v(a0)}, {v(a0)}, {v(a0)} row_ror:8 row_mask:0xf bank_mask:0xf")
    A(f"v_add_f32 {v(a0)}, {v(a0)}, {v(V_CX)}")
    A(f"v_cvt_pk_bf16_f32 {v(a0)}, {v(a0)}, {v(a0)}")
    A("s_mov_b32 exec_lo, 0xff\ns_mov_b32 exec_hi, 0xff")
    A(f"buffer_store_short {v(a0)}, {v(V_F1OFF)}, {s(R_OUT,4)}, 0 offen")
    A(f"s_cmp_eq_u32 {s(S_ID)}, 0")
    A("s_cbranch_scc0 L_noep")
    A(f"v_mov_b32 {v(T+2)}, {s(S_TLO)}\nv_mov_b32 {v(T+3)}, {s(S_THI)}\nv_mov_b32 {v(T+1)}, 0")
    A(f"s_mov_b32 {s(S_T1)}, {EP_OFF}")
    A("s_mov_b64 exec, 1")
    A(f"buffer_store_dwordx2 {v(T+2,2)}, {v(T+1)}, {s(R_WS,4)}, {s(S_T1)} offen{STF}")
    A.label("L_noep")
    if o["stamp"]:
        A("s_waitcnt vmcnt(0)")
        A("s_mov_b64 exec, -1")
        stamp_out()
    A.label("L_end")
    A("s_endpgm")
    if o["align"]: A.L.append(".p2align 6")
    for _ in range(o["shift"]): A("s_nop 0")
    A.label("L_kbody")
    for i in range(32):
        n = i % 16
        b = V_BUF + 4*i
        if i % 8 == 0: trace()
        A("s_waitcnt vmcnt(31)")
        A(f"v_dot2_f32_bf16 {v(V_ACC+n)}, {v(b)}, {v(V_Q)}, 0")
        for k in range(1, 1 if o["strip"] else 4):
            A(f"v_dot2_f32_bf16 {v(V_ACC+n)}, {v(b+k)}, {v(V_Q+k)}, {v(V_ACC+n)}")
        if o["pad"]: A.nop(o["pad"])
        A(f"buffer_load_dwordx4 {v(b,4)}, {v(V_KOFF)}, {s(R_CUR,4)}, {s(S_SOFF)} offen{NTK}")
        if o["addk"]: A(f"s_addk_i32 {s(S_SOFF)}, 0x1000")
        else: A(f"s_add_u32 {s(S_SOFF)}, {s(S_SOFF)}, 4096")
        for _ in range(o["kpad"]): A("s_nop 0")
        if n == 15:
            x = V_ACC
            A.nop(2)
            for t in range(8):
                A(f"v_add_f32_dpp {v(x+t)}, {v(x+t)}, {v(x+t)} row_ror:8 row_mask:0xf bank_mask:0x3")
                A(f"v_add_f32_dpp {v(x+t)}, {v(x+t+8)}, {v(x+t+8)} row_ror:8 row_mask:0xf bank_mask:0xc")
            for t in range(4):
                A(f"v_add_f32_dpp {v(x+t)}, {v(x+t)}, {v(x+t)} row_half_mirror row_mask:0xf bank_mask:0x5")
                A(f"v_add_f32_dpp {v(x+t)}, {v(x+t+4)}, {v(x+t+4)} row_half_mirror row_mask:0xf bank_mask:0xa")
            A.nop(2)
            for t in range(4):
                A(f"v_add_f32_dpp {v(x+t)}, {v(x+t)}, {v(x+t)} quad_perm:[2,3,0,1] row_mask:0xf bank_mask:0xf")
            A(f"v_cndmask_b32 {v(x)}, {v(x)}, {v(x+2)}, {s(S_M2,2)}")
            A(f"v_cndmask_b32 {v(x+1)}, {v(x+1)}, {v(x+3)}, {s(S_M2,2)}")
            A.nop(2)
            A(f"v_add_f32_dpp {v(x)}, {v(x)}, {v(x)} quad_perm:[1,0,3,2] row_mask:0xf bank_mask:0xf")
            A(f"v_add_f32_dpp {v(x+1)}, {v(x+1)}, {v(x+1)} quad_perm:[1,0,3,2] row_mask:0xf bank_mask:0xf")
            dst = V_PC0 if i == 15 else V_PC1
            A(f"v_cndmask_b32 {v(dst)}, {v(x)}, {v(x+1)}, {s(S_M1,2)}")
    A(f"s_setpc_b64 {s(S_RET,2)}")
    for lbl, refill in (("L_vbody", True), ("L_vdrain", False)):
        if o["align"]: A.L.append(".p2align 6")
        for _ in range(o["shift"]): A("s_nop 0")
        A.label(lbl)
        for i in range(32):
            n = i % 16
            b = V_BUF + 4*i
            P = V_PC0 if i < 16 else V_PC1
            if i % 8 == 0: trace()
            for k in range(1 if o["strip"] else 4):
                A(f"v_and_b32_dpp {v(V_A0+k)}, {v(P)}, {v(V_M+k)} row_newbcast:{n} row_mask:0xf bank_mask:0xf")
            if o["pad"]: A.nop(o["pad"])
            A(f"s_waitcnt vmcnt({31 if refill else 31-i})")
            A.nop(1)
            A(f"v_mfma_f32_16x16x32_bf16 {v(V_O,4)}, {v(V_A0,4)}, {v(b,4)}, {v(V_O,4)}")
            if refill:
                A(f"buffer_load_dwordx4 {v(b,4)}, {v(V_KOFF)}, {s(R_CUR,4)}, {s(S_SOFF)} offen{NTK}")
                if o["addk"]: A(f"s_addk_i32 {s(S_SOFF)}, 0x1000")
                else: A(f"s_add_u32 {s(S_SOFF)}, {s(S_SOFF)}, 4096")
                for _ in range(o["vpad"]): A("s_nop 0")
        A(f"s_setpc_b64 {s(S_RET,2)}")
    A.L.append(f""".section .rodata,"a"
.p2align 6
.amdhsa_kernel {NAME}
  .amdhsa_next_free_vgpr 512
  .amdhsa_next_free_sgpr {NSGPR}
  .amdhsa_accum_offset 256
  .amdhsa_group_segment_fixed_size 0
  .amdhsa_kernarg_size 96
  .amdhsa_user_sgpr_count 2
  .amdhsa_user_sgpr_kernarg_segment_ptr 1
  .amdhsa_system_sgpr_workgroup_id_x 1
  .amdhsa_float_denorm_mode_32 3
  .amdhsa_float_denorm_mode_16_64 3
.end_amdhsa_kernel""")
    return A.text()

def dump(A, regs):
    A("s_waitcnt vmcnt(0) lgkmcnt(0)")
    A(f"s_mov_b32 s60, s{P_WS}\ns_mov_b32 s61, s{P_WS+1}\ns_mov_b32 s62, 0x10000000\ns_mov_b32 s63, 0x20000")
    A(f"s_lshl_b32 s{S_T1}, s{S_ID}, 10")
    A(f"s_add_u32 s{S_T1}, s{S_T1}, {DBG_OFF}")
    A(f"v_lshlrev_b32 v79, 2, v0")
    for k, r in enumerate(regs):
        A(f"buffer_store_dword v{r}, v79, s[60:63], s{S_T1} offen")
        A(f"s_add_u32 s{S_T1}, s{S_T1}, {65536*4}")
    A("s_waitcnt vmcnt(0)")
    A("s_endpgm")

if __name__ == "__main__":
    import json
    opts = json.loads(sys.argv[2]) if len(sys.argv) > 2 else {}
    open(sys.argv[1], "w").write(gen(opts))
```
